```python
import torch

def _softmax(x, axis=-1):
    return torch.softmax(x, dim=axis)

def _gelu(x):
    return torch.nn.functional.gelu(x, approximate='tanh')

def _silu(x):
    return torch.nn.functional.silu(x)

def _sigmoid(x):
    return torch.sigmoid(x)

def _layernorm(x, axis=-1, eps=1e-05):
    m = x.mean(dim=axis, keepdim=True)
    v = x.var(dim=axis, keepdim=True, unbiased=False)
    return (x - m) / torch.sqrt(v + eps)

def _scatter_add(tgt, idx, src, axis=0):
    return tgt.clone().index_add_(axis, idx, src)

def _segment_sum(src, seg, n):
    out = torch.zeros((n,) + src.shape[1:], dtype=src.dtype)
    return out.index_add_(0, seg, src)

def _pad(x, pw):
    flat = tuple((v for pair in reversed(pw) for v in pair))
    return torch.nn.functional.pad(x, flat)
kernel_name = 'adaLN_cond__gqa_block_cached__mixer_gmlp__prompt'

def setup_inputs():

    _w = lambda a: (lambda t: t.to(torch.bfloat16) if t.is_floating_point() else t)(torch.as_tensor(a))

    def _A_setup():
        B, Sq, D = (1, 2048, 576)
        Hq, Hkv, Sk, Dh = (32, 16, 2048, 128)
        assert Hq % Hkv == 0, (Hq, Hkv)
        return {'x': _w((lambda *s: torch.randn(*s, dtype=torch.bfloat16) * 0.05)(B, Sq, D)), 'k_cache': _w((lambda *s: torch.randn(*s, dtype=torch.bfloat16) * 3.2)(B, Hkv, Sk, Dh)), 'v_cache': _w((lambda *s: torch.randn(*s, dtype=torch.bfloat16) * 0.4)(B, Hkv, Sk, Dh)), 'wq': _w((lambda *s: torch.randn(*s, dtype=torch.bfloat16) * 3.2)(D, Hq * Dh) * D ** (-0.5)), 'wo': _w((lambda *s: torch.randn(*s, dtype=torch.bfloat16) * 0.4)(Hq * Dh, D) * (Hq * Dh) ** (-0.5))}
    _A_in = _A_setup()

    def _B_setup():
        B, S, D, F = (1, 2048, 576, 4608)
        Fh = F // 2
        return {'x': _w((lambda *s: torch.randn(*s, dtype=torch.bfloat16) * 0.05)(B, S, D)), 'w_in': _w((lambda *s: torch.randn(*s, dtype=torch.bfloat16) * 1.6)(D, 2 * Fh)), 'w_sp': _w(0.01 * (lambda *s: torch.randn(*s, dtype=torch.bfloat16) * 1.6)(S, S)), 'b_sp': _w(1.0 + 0.01 * (lambda *s: torch.randn(*s, dtype=torch.bfloat16) * 0.05)(S)), 'w_out': _w((lambda *s: torch.randn(*s, dtype=torch.bfloat16) * 0.05)(Fh, D))}
    _B_in = _B_setup()
    return {'A_x': _A_in['x'], 'A_k_cache': _A_in['k_cache'], 'A_v_cache': _A_in['v_cache'], 'A_wq': _A_in['wq'], 'A_wo': _A_in['wo'], 'B_x': _B_in['x'], 'B_w_in': _B_in['w_in'], 'B_w_sp': _B_in['w_sp'], 'B_b_sp': _B_in['b_sp'], 'B_w_out': _B_in['w_out'], 'c': _w((lambda *s: torch.randn(*s, dtype=torch.bfloat16) * 0.2)(1, 576) * 8.0), 'w_mod': _w((lambda *s: torch.randn(*s, dtype=torch.bfloat16) * 0.2)(576, 6 * 576) * 576 ** (-0.5) * 8.0)}

def reference(A_x, A_k_cache, A_v_cache, A_wq, A_wo, B_x, B_w_in, B_w_sp, B_b_sp, B_w_out, c, w_mod):

    def _A_ref(x, k_cache, v_cache, wq, wo):
        B, Sq, D = x.shape
        Hq, Dh = (32, 128)
        Hkv = k_cache.shape[1]
        rep = Hq // Hkv
        q = (lambda x, *d: x.permute(*d))((x @ wq).reshape(B, Sq, Hq, Dh), 0, 2, 1, 3)
        k = (lambda x, n, axis: torch.repeat_interleave(x, n, dim=axis))(k_cache, rep, axis=1)
        v = (lambda x, n, axis: torch.repeat_interleave(x, n, dim=axis))(v_cache, rep, axis=1)
        scores = torch.einsum('bhqd,bhkd->bhqk', q, k) * Dh ** (-0.5)
        p = _softmax(scores, axis=-1)
        o = torch.einsum('bhqk,bhkd->bhqd', p, v)
        return (lambda x, *d: x.permute(*d))(o, 0, 2, 1, 3).reshape(B, Sq, Hq * Dh) @ wo

    def _B_ref(x, w_in, w_sp, b_sp, w_out):
        B, S, D = x.shape
        F = w_in.shape[-1]
        Fh = F // 2
        z = _gelu(torch.einsum('bsd,df->bsf', x, w_in))
        z1 = z[..., :Fh].clone()
        z2 = _layernorm(z[..., Fh:], axis=-1)
        g = torch.einsum('ts,bsf->btf', w_sp, z2) + b_sp[None, :, None]
        return torch.einsum('bsf,fd->bsd', z1 * g, w_out)
    x = A_x
    mod = (_silu(c) @ w_mod).reshape(c.shape[0], 6, 1, -1)
    sa, ca, ga, sb, cb, gb = (mod[:, 0].clone(), mod[:, 1].clone(), mod[:, 2].clone(), mod[:, 3].clone(), mod[:, 4].clone(), mod[:, 5].clone())
    h = _layernorm(x, axis=-1) * (1 + ca) + sa
    x = x + ga * _A_ref(h, A_k_cache, A_v_cache, A_wq, A_wo)
    h = _layernorm(x, axis=-1) * (1 + cb) + sb
    x = x + gb * _B_ref(h, B_w_in, B_w_sp, B_b_sp, B_w_out)
    return x
```

```python
import re

TRANS = ('v_exp_f32', 'v_log_f32', 'v_rcp_f32', 'v_rsq_f32', 'v_sqrt_f32', 'v_sin_f32', 'v_cos_f32')

_reg_re = re.compile(r'\b([vsa])\[(\d+):(\d+)\]|\b([vsa])(\d+)\b|\b(vcc|exec|m0|scc)\b')


def regs_of(text):
    out = []
    for m in _reg_re.finditer(text):
        if m.group(1):
            out += [(m.group(1), i) for i in range(int(m.group(2)), int(m.group(3)) + 1)]
        elif m.group(4):
            out.append((m.group(4), int(m.group(5))))
        else:
            out.append((m.group(6), 0))
    return out


class Ins:
    __slots__ = ('text', 'op', 'kind', 'wr', 'rd', 'srcc', 'passes', 'states', 'label', 'wide_store', 'ab')

    def __init__(self, text):
        self.text = text
        t = text.split(';')[0].strip()
        self.label = t.endswith(':')
        self.wr = set(); self.rd = set(); self.srcc = set(); self.ab = set()
        self.passes = 0
        self.states = 1
        self.wide_store = False
        if self.label or not t or t.startswith('.'):
            self.op = ''; self.kind = 'none'; self.states = 0
            return
        parts = t.split(None, 1)
        op = parts[0]
        self.op = op
        ops = [o.strip() for o in parts[1].split(',')] if len(parts) > 1 else []
        if op == 's_nop':
            self.kind = 'nop'; self.states = int(ops[0], 0) + 1
            return
        if op.startswith('v_mfma'):
            self.kind = 'mfma'
            self.passes = 8 if '32x32' in op else 4
            self.wr = set(regs_of(ops[0]))
            self.ab = set(regs_of(ops[1])) | set(regs_of(ops[2]))
            self.srcc = set(regs_of(ops[3]))
            self.rd = self.ab | self.srcc
            return
        if op.startswith('v_'):
            self.kind = 'valu'
            if op.startswith('v_cmp'):
                self.wr = set(regs_of(ops[0])); self.rd = set(r for o in ops[1:] for r in regs_of(o))
            elif op.startswith('v_permlane') or op.startswith('v_swap'):
                self.wr = set(regs_of(ops[0])) | set(regs_of(ops[1])); self.rd = set(self.wr)
            elif op in ('v_add_co_u32', 'v_sub_co_u32', 'v_addc_co_u32', 'v_subb_co_u32', 'v_div_scale_f32'):
                self.wr = set(regs_of(ops[0])) | set(regs_of(ops[1])); self.rd = set(r for o in ops[2:] for r in regs_of(o))
            else:
                self.wr = set(regs_of(ops[0])); self.rd = set(r for o in ops[1:] for r in regs_of(o))
                if op.startswith('v_fmac') or op.startswith('v_dot2c') or 'dpp' in text or op.startswith('v_writelane'):
                    self.rd |= self.wr
                if op == 'v_div_fmas_f32':
                    self.rd.add(('vcc', 0))
            return
        if op.startswith('ds_'):
            self.kind = 'ds'
            if op.startswith('ds_read') or op.startswith('ds_bpermute') or op.startswith('ds_swizzle') or op.startswith('ds_permute'):
                self.wr = set(regs_of(ops[0])); self.rd = set(r for o in ops[1:] for r in regs_of(o))
            else:
                self.rd = set(r for o in ops for r in regs_of(o))
            return
        if op.startswith('buffer_') or op.startswith('global_'):
            self.kind = 'vmem'
            lds = re.search(r'\blds\b', t) is not None
            if 'load' in op and not lds:
                self.wr = set(regs_of(ops[0])); self.rd = set(r for o in ops[1:] for r in regs_of(o))
            else:
                self.rd = set(r for o in ops for r in regs_of(o))
                if lds:
                    self.rd.add(('m0', 0))
                if 'store' in op and ('x3' in op or 'x4' in op):
                    self.wide_store = True
                    self.ab = set(regs_of(ops[0])) if op.startswith('buffer_') else set(regs_of(ops[1]))
            return
        if op.startswith('s_'):
            self.kind = 'salu'
            if op.startswith('s_cmp') or op.startswith('s_cbranch') or op in ('s_branch', 's_barrier', 's_waitcnt', 's_endpgm', 's_setprio', 's_sleep'):
                self.rd = set(r for o in ops for r in regs_of(o))
            elif op.startswith('s_load') or op.startswith('s_memtime'):
                self.kind = 'smem'
                self.wr = set(regs_of(ops[0])); self.rd = set(r for o in ops[1:] for r in regs_of(o))
            else:
                self.wr = set(regs_of(ops[0])); self.rd = set(r for o in ops[1:] for r in regs_of(o))
                if 'saveexec' in op:
                    self.wr.add(('exec', 0))
            return
        raise ValueError('unknown instruction ' + text)


def need(prev, cur):
    n = 0
    pv = {r for r in prev.wr if r[0] in 'va'}
    ps = {r for r in prev.wr if r[0] in ('s', 'vcc')}
    if prev.kind == 'valu':
        if cur.kind == 'mfma' and pv & cur.rd:
            n = max(n, 2)
        if prev.op in TRANS and cur.kind in ('valu',) and cur.op not in TRANS and pv & cur.rd:
            n = max(n, 1)
        if prev.op in TRANS and cur.kind in ('mfma',) and pv & cur.rd:
            n = max(n, 2)
        if cur.kind == 'valu':
            if (cur.op.startswith('v_readfirstlane') or cur.op.startswith('v_readlane')) and pv & cur.rd:
                n = max(n, 1)
            if (cur.op.startswith('v_permlane') or 'dpp' in cur.text) and pv & cur.rd:
                n = max(n, 2)
            if ps & cur.rd:
                n = max(n, 4 if (cur.op.startswith('v_readlane') or cur.op.startswith('v_writelane') or cur.op == 'v_div_fmas_f32') else 2)
            if 'sdwa' in prev.text and pv & (cur.rd | cur.wr):
                n = max(n, 1)
        if cur.kind == 'vmem' and ps & cur.rd:
            n = max(n, 5)
        if cur.kind == 'salu' and ps & cur.rd:
            n = max(n, 1)
    if prev.kind == 'mfma':
        big = prev.passes == 8
        if cur.kind == 'mfma':
            if pv & cur.ab:
                n = max(n, 12 if big else 8)
            if pv & cur.srcc:
                if not (cur.srcc == prev.wr and cur.passes == prev.passes):
                    n = max(n, 10 if big else 6)
            elif pv & cur.wr:
                n = max(n, 10 if big else 6)
        elif cur.kind in ('valu', 'vmem', 'ds'):
            if pv & (cur.rd | cur.wr):
                n = max(n, 12 if big else 8)
            if cur.kind == 'valu' and prev.srcc & cur.wr:
                n = max(n, 7 if big else 3)
    if prev.kind == 'salu' and ('m0', 0) in prev.wr and cur.kind == 'vmem' and ('m0', 0) in cur.rd:
        n = max(n, 1)
    if prev.kind == 'vmem' and prev.wide_store and prev.ab & cur.wr and cur.kind in ('valu', 'mfma', 'ds', 'vmem'):
        n = max(n, 2)
    return n


WINDOW = 20


class Kernel:
    def __init__(self, name):
        self.name = name
        self.ins = []
        self.nlabel = 0
        self.maxv = 0
        self.maxs = 0

    def __call__(self, text):
        for line in text.strip('\n').split('\n'):
            line = line.strip()
            if not line:
                continue
            self._emit(Ins(line))

    def _emit(self, i):
        for r in i.wr | i.rd:
            if r[0] == 'v': self.maxv = max(self.maxv, r[1])
            if r[0] == 's': self.maxs = max(self.maxs, r[1])
        if i.kind not in ('none', 'nop'):
            req = self._required(self.ins, i)
            while req > 0:
                k = min(req, 16)
                self.ins.append(Ins(f's_nop {k-1}'))
                req -= k
        self.ins.append(i)

    @staticmethod
    def _required(hist, cur):
        dist = 0
        req = 0
        for p in reversed(hist):
            if dist >= WINDOW:
                break
            if p.kind not in ('none',):
                n = need(p, cur)
                req = max(req, n - dist)
                dist += p.states
        return req

    def label(self, base='L'):
        self.nlabel += 1
        return f'{self.name}_{base}{self.nlabel}'

    def fence(self, n=16):
        while n > 0:
            k = min(n, 16)
            self.ins.append(Ins(f's_nop {k-1}'))
            n -= k

    def check_backedge(self, label):
        start = next(i for i, x in enumerate(self.ins) if x.label and x.text.strip() == label + ':')
        body = self.ins[start:]
        hist = list(body)
        for k, cur in enumerate(body[:WINDOW + 4]):
            if cur.kind in ('none', 'nop'):
                hist.append(cur); continue
            req = self._required(hist, cur)
            if req > 0:
                raise RuntimeError(f'hazard across back edge of {label}: {cur.text} needs {req} more')
            hist.append(cur)

    def text(self):
        out = [f'.p2align 8\n{self.name}:']
        for i in self.ins:
            out.append(i.text if i.label else '    ' + i.text)
        return '\n'.join(out) + '\n'

    def desc(self, nv=None, ns=None):
        nv = nv or (self.maxv + 1)
        nv = (nv + 7) // 8 * 8
        tot = nv + getattr(self, 'nacc', 0)
        ns = ns or max(self.maxs + 1, 16)
        return f""".p2align 6
.amdhsa_kernel {self.name}
  .amdhsa_next_free_vgpr {tot}
  .amdhsa_next_free_sgpr {ns}
  .amdhsa_accum_offset {nv}
  .amdhsa_group_segment_fixed_size 0
  .amdhsa_kernarg_size 120
  .amdhsa_user_sgpr_count 2
  .amdhsa_user_sgpr_kernarg_segment_ptr 1
  .amdhsa_system_sgpr_workgroup_id_x 1
  .amdhsa_float_denorm_mode_32 3
.end_amdhsa_kernel
"""


def vr(a, n=1):
    return f'v{a}' if n == 1 else f'v[{a}:{a+n-1}]'


def sr(a, n=1):
    return f's{a}' if n == 1 else f's[{a}:{a+n-1}]'


def f32bits(x):
    import struct
    return '0x%08x' % struct.unpack('<I', struct.pack('<f', x))[0]
```

```python
from common import *
import math
import numpy as np

LOG2E = 1.4426950408889634


class Cnt:
    def __init__(self, k, name, maxn):
        self.k = k; self.name = name; self.q = []; self.maxn = maxn

    def add(self, tag, n=1):
        self.q += [tag] * n

    def wait(self, tag):
        idx = [i for i, t in enumerate(self.q) if t == tag]
        if not idx:
            return
        n = len(self.q) - 1 - idx[-1]
        n = min(n, self.maxn)
        self.k(f's_waitcnt {self.name}({n})')
        self.q = self.q[len(self.q) - n:] if n else []


def k_attn(rounding=True, VPM=None):
    k = Kernel('attn_kernel')
    done = k.label('done')
    k('s_cmp_ge_u32 s2, 256')
    k(f's_cbranch_scc1 {done}')
    p = load_ptrs(k, ['k', 'v', 'wq', 'ws'], 4)
    k('s_and_b32 s40, s2, 7')
    k('s_lshr_b32 s41, s2, 3')
    k('s_lshr_b32 s42, s41, 4')
    k('s_lshl_b32 s43, s40, 1')
    k('s_add_u32 s42, s42, s43')
    k('s_bfe_u32 s43, s41, 0x10003')
    k('s_lshl_b32 s44, s42, 1')
    k('s_add_u32 s43, s43, s44')
    k('s_and_b32 s44, s41, 7')
    k('v_lshrrev_b32 v1, 6, v0')
    k('v_and_b32 v2, 63, v0')
    k('v_readfirstlane_b32 s45, v1')
    k('s_waitcnt lgkmcnt(0)')
    srd(k, 12, p['k'], 'k')
    srd(k, 16, p['v'], 'v')
    srd(k, 20, p['wq'], 'wq')
    srd(k, 24, p['ws'], 'h')
    srd(k, 28, p['ws'], 'o')
    QF = 8
    O = QF + 32
    S = O + 64
    P = S + 64
    FB = P + 32
    NB = 8
    KAD = FB + 32
    VAD = KAD + 8
    DK = VAD + 4
    DV = DK + 2
    MC, LL, LS0, LS1, FL = 247, 248, 249, 250, 251
    TA = (252, 253, 254)
    TB = (255, 6, 7)
    HOFF = QF
    QA = QF + 1
    DW = QF + 5
    k('s_mov_b32 s60, 0xffff0000')
    if rounding:
        k(f's_mov_b32 s61, {f32bits(float(np.float32(128 ** -0.5)))}')
        k(f's_mov_b32 s62, {f32bits(LOG2E)}')
    else:
        k(f's_mov_b32 s62, {f32bits(LOG2E * 128 ** -0.5)}')
    k(f's_mov_b32 s63, {f32bits(-1.0)}')
    k('v_and_b32 v3, 31, v2')
    k('v_lshrrev_b32 v4, 5, v2')
    k('s_lshl_b32 s46, s44, 8')
    k('s_lshl_b32 s47, s45, 5')
    k('s_add_u32 s46, s46, s47')
    k('v_add_u32 v5, s46, v3')
    k('v_mul_u32_u24 v6, 1152, v5')
    k(f'v_lshl_add_u32 v{HOFF}, v4, 4, v6')
    k('v_and_b32 v6, 15, v3')
    k('v_xor_b32 v6, v6, v4')
    k('v_lshlrev_b32 v7, 8, v3')
    for t in range(8):
        k(f'v_xor_b32 v1, {2*t}, v6')
        k(f'v_lshl_add_u32 v{KAD+t}, v1, 4, v7')
    k('v_bfe_u32 v5, v2, 2, 2')
    k('v_lshl_add_u32 v6, v4, 2, v5')
    k('v_lshlrev_b32 v6, 8, v6')
    k('v_bfe_u32 v7, v2, 4, 1')
    k('v_lshl_add_u32 v6, v7, 5, v6')
    k('v_and_b32 v7, 1, v2')
    k('v_lshl_add_u32 v6, v7, 4, v6')
    k('v_bfe_u32 v7, v2, 1, 1')
    k('v_lshl_add_u32 v6, v7, 3, v6')
    for D in range(4):
        k(f'v_xor_b32 v7, {D}, v5')
        k(f'v_lshl_add_u32 v{QA+D}, v7, 6, v6')
        k(f'v_add_u32 v{VAD+D}, 0x10000, v{QA+D}')
    k('v_lshrrev_b32 v5, 4, v2')
    k('v_and_b32 v6, 15, v2')
    k('s_lshl_b32 s47, s45, 3')
    for e in range(2):
        k(f'v_add_u32 v7, s47, v5')
        if e:
            k('v_add_u32 v7, 4, v7')
        k('v_and_b32 v1, 15, v7')
        k('v_xor_b32 v1, v1, v6')
        k('v_lshlrev_b32 v7, 8, v7')
        k(f'v_lshl_add_u32 v{DK+e}, v1, 4, v7')
    k('v_lshlrev_b32 v1, 2, v5')
    k('v_xor_b32 v1, v1, v6')
    k('v_add_u32 v7, s47, v5')
    k('v_lshlrev_b32 v7, 8, v7')
    k(f'v_lshl_add_u32 v{DV}, v1, 4, v7')
    k('s_lshr_b32 s48, s45, 1')
    k('s_lshl_b32 s48, s48, 4')
    k('s_and_b32 s49, s45, 1')
    k('s_lshl_b32 s49, s49, 2')
    k('s_add_u32 s48, s48, s49')
    k('v_add_u32 v7, s48, v5')
    k('v_lshlrev_b32 v7, 13, v7')
    k(f'v_lshl_add_u32 v{DW}, v1, 4, v7')
    k('s_lshl_b32 s50, s45, 11')
    k('s_lshl_b32 s51, s43, 8')
    k('s_lshl_b32 s52, s42, 19')
    k('s_mov_b32 s53, s52')

    vm = Cnt(k, 'vmcnt', 63)
    lg = Cnt(k, 'lgkmcnt', 15)

    def hreg(c, t):
        return S + (c % 6) * 16 + 4 * t

    def load_h(c):
        for t in range(4):
            r = hreg(c, t)
            k(f'buffer_load_dwordx4 v[{r}:{r+3}], v{HOFF}, s[24:27], 0 offen offset:{128*c+32*t}')
        vm.add(('h', c), 4)

    def dma_wq(c):
        k(f's_add_u32 m0, s50, {c*16384}')
        k(f'buffer_load_dwordx4 v{DW}, s[20:23], s51 offen lds')
        k(f's_add_u32 s54, s51, 65536')
        k(f's_add_u32 m0, s50, {c*16384+1024}')
        k(f'buffer_load_dwordx4 v{DW}, s[20:23], s54 offen lds')
        k(f's_add_u32 s51, s51, {64*8192}')
        vm.add(('w', c), 2)

    def dma_k(slot, tag):
        k(f's_add_u32 m0, s50, {slot*16384}')
        k(f'buffer_load_dwordx4 v{DK}, s[12:15], s52 offen lds')
        k(f's_add_u32 m0, s50, {slot*16384+1024}')
        k(f'buffer_load_dwordx4 v{DK+1}, s[12:15], s52 offen lds')
        k('s_add_u32 s52, s52, 16384')
        vm.add(tag, 2)

    def dma_v(slot, tag):
        k(f's_add_u32 m0, s50, {65536+slot*16384}')
        k(f'buffer_load_dwordx4 v{DV}, s[16:19], s53 offen lds')
        k(f'buffer_load_dwordx4 v{DV}, s[16:19], s53 offen offset:1024 lds')
        k('s_add_u32 s53, s53, 16384')
        vm.add(tag, 2)

    for c in range(9):
        if c < 6:
            load_h(c)
        dma_wq(c)
    for i in range(64):
        k(f'v_mov_b32 v{O+i}, 0')
    fbn = {'r': 0, 'u': 0}

    def rd_tr(areg, off, tag):
        b = FB + 4 * (fbn['r'] % NB); fbn['r'] += 1
        k(f'ds_read_b64_tr_b16 v[{b}:{b+1}], v{areg} offset:{off}')
        k(f'ds_read_b64_tr_b16 v[{b+2}:{b+3}], v{areg} offset:{off+2048}')
        lg.add(tag, 2)

    def rd_k(areg, off, tag):
        b = FB + 4 * (fbn['r'] % NB); fbn['r'] += 1
        k(f'ds_read_b128 v[{b}:{b+3}], v{areg} offset:{off}')
        lg.add(tag, 1)

    def use_frag(tag):
        lg.wait(tag)
        b = FB + 4 * (fbn['u'] % NB); fbn['u'] += 1
        return b

    AH = 6
    for c in range(9):
        vm.wait(('w', c))
        if c >= 6:
            vm.wait(('h', c))
        k('s_barrier')
        if c == 8:
            for D in range(4):
                k(f'v_add_u32 v{QA+D}, 0x20000, v{QA+D}')
            for t in range(4):
                dma_k(t, ('k', t))
            for t in range(2):
                dma_v(t, ('v', t))
        if c < 4:
            areg, cb = QA, c * 16384
        elif c < 8:
            areg, cb = VAD, (c - 4) * 16384
        else:
            areg, cb = QA, 0
        seq = [(t, D) for t in range(4) for D in range(4)]
        for i in range(AH):
            t, D = seq[i]
            rd_tr(areg + D, cb + t * 4096, (c, t, D))
        for i, (t, D) in enumerate(seq):
            if i + AH < 16:
                t2, D2 = seq[i + AH]
                rd_tr(areg + D2, cb + t2 * 4096, (c, t2, D2))
            b = use_frag((c, t, D))
            hr = hreg(c, t)
            k(f'v_mfma_f32_32x32x16_bf16 v[{O+16*D}:{O+16*D+15}], v[{b}:{b+3}], v[{hr}:{hr+3}], v[{O+16*D}:{O+16*D+15}]')
        if c < 3:
            load_h(c + 6)
    for D in range(4):
        for i in range(8):
            k(f'v_cvt_pk_bf16_f32 v{QF+8*D+i}, v{O+16*D+2*i}, v{O+16*D+2*i+1}')
    for i in range(64):
        k(f'v_mov_b32 v{O+i}, 0')
    k(f'v_mov_b32 v{MC}, 0')
    k(f'v_mov_b32 v{LL}, 0')
    k(f'v_mov_b32 v{FL}, {f32bits(-3.0e38)}')

    def qk_ops(j):
        slot = j % 4
        sb = S + 32 * (j & 1)
        ops = []
        for kb in range(2):
            for t in range(8):
                tag = ('qk', j, kb, t)
                rd = (lambda t=t, kb=kb, tag=tag: rd_k(KAD + t, slot * 16384 + kb * 8192, tag))
                d = sb + 16 * kb
                c = '0' if t == 0 else f'v[{d}:{d+15}]'
                mf = (lambda b, t=t, d=d, c=c: f'v_mfma_f32_32x32x16_bf16 v[{d}:{d+15}], v[{b}:{b+3}], v[{QF+4*t}:{QF+4*t+3}], {c}')
                ops.append((rd, mf, tag))
        return ops

    def pv_ops(j):
        slot = j % 4
        pb = P + 16 * (j & 1)
        ops = []
        for u in range(4):
            for D in range(4):
                tag = ('pv', j, u, D)
                rd = (lambda u=u, D=D, tag=tag: rd_tr(VAD + D, slot * 16384 + u * 4096, tag))
                d = O + 16 * D
                mf = (lambda b, u=u, d=d: f'v_mfma_f32_32x32x16_bf16 v[{d}:{d+15}], v[{b}:{b+3}], v[{pb+4*u}:{pb+4*u+3}], v[{d}:{d+15}]')
                ops.append((rd, mf, tag))
        return ops

    def sm_pair(a0, a1, pd, tt, first):
        t, e0, e1 = tt
        s = []
        if rounding:
            s += [f'v_cvt_pk_bf16_f32 v{t}, v{a0}, v{a1}',
                  f'v_lshlrev_b32 v{a0}, 16, v{t}',
                  f'v_and_b32 v{a1}, s60, v{t}',
                  f'v_mul_f32 v{a0}, s61, v{a0}',
                  f'v_mul_f32 v{a1}, s61, v{a1}',
                  f'v_cvt_pk_bf16_f32 v{t}, v{a0}, v{a1}',
                  f'v_lshlrev_b32 v{a0}, 16, v{t}',
                  f'v_and_b32 v{a1}, s60, v{t}']
        s += [f'v_fma_f32 v{a0}, v{a0}, s62, -v{MC}',
              f'v_fma_f32 v{a1}, v{a1}, s62, -v{MC}',
              f'v_exp_f32 v{e0}, v{a0}',
              f'v_exp_f32 v{e1}, v{a1}']
        if first:
            s += [f'v_cvt_pk_bf16_f32 v{pd}, v{e0}, v{e1}',
                  f'v_mov_b32 v{LS0}, v{e0}',
                  f'v_mov_b32 v{LS1}, v{e1}']
        else:
            s += [f'v_cvt_pk_bf16_f32 v{pd}, v{e0}, v{e1}',
                  f'v_add_f32 v{LS0}, v{LS0}, v{e0}',
                  f'v_add_f32 v{LS1}, v{LS1}, v{e1}']
        return s

    def sm_stream(j):
        sb = S + 32 * (j & 1)
        pb = P + 16 * (j & 1)
        out = []
        for i in range(0, 16, 2):
            sa = sm_pair(sb + 2 * i, sb + 2 * i + 1, pb + i, TA, i == 0)
            sbb = sm_pair(sb + 2 * i + 2, sb + 2 * i + 3, pb + i + 1, TB, False)
            h = len(sa) // 2
            merged = sa[:h]
            x, y = sa[h:], sbb
            while x or y:
                if y: merged.append(y.pop(0))
                if x: merged.append(x.pop(0))
            out += merged
        return out

    slow_blocks = []

    def check(j):
        sl = k.label('slow'); rt = k.label('ret')
        k(f'v_add_f32 v{LS0}, v{LS0}, v{LS1}')
        k(f'v_cmp_nge_f32 vcc, s63, v{LS0}')
        k(f's_cbranch_vccnz {sl}')
        k(f'{rt}:')
        k(f'v_add_f32 v{LL}, v{LL}, v{LS0}')
        slow_blocks.append((sl, rt, j & 1))

    def iteration(j, do_pv, do_qk, issue, pre_next):
        vm.wait(('v', j))
        vm.wait(('k', j + 1))
        k('s_barrier')
        if issue:
            dma_k((j + 4) % 4, ('k', j + 4))
            dma_v((j + 2) % 4, ('v', j + 2))
        ops = (pv_ops(j - 1) if do_pv else []) + (qk_ops(j + 1) if do_qk else [])
        nxt = pv_ops(j) if pre_next else []
        allops = ops + nxt
        valu = sm_stream(j)
        nm = len(ops)
        start = AH if do_pv else 0
        if not do_pv:
            for i in range(AH):
                allops[i][0]()
            start = AH
        per = len(valu) / nm
        acc = 0.0
        vi = 0
        for i, (rd, mf, tag) in enumerate(ops):
            acc += per
            n = int(acc) - vi
            for _ in range(n):
                k(valu[vi]); vi += 1
            if i + AH < len(allops):
                allops[i + AH][0]()
            b = use_frag(tag)
            k(mf(b))
        while vi < len(valu):
            k(valu[vi]); vi += 1
        check(j)

    vm.wait(('k', 0))
    k('s_barrier')
    ops = qk_ops(0)
    for i in range(AH):
        ops[i][0]()
    for i, (rd, mf, tag) in enumerate(ops):
        if i + AH < 16:
            ops[i + AH][0]()
        b = use_frag(tag)
        k(mf(b))
    iteration(0, False, True, True, True)
    for j in range(1, 4):
        iteration(j, True, True, True, True)
    L = k.label('loop')
    k('s_mov_b32 s56, 6')
    vq0 = [(a, b - 4) for (a, b) in vm.q]
    lq0 = list(lg.q)
    k(f'{L}:')
    for j in range(4, 8):
        iteration(j, True, True, True, True)
    assert [(a, b - 8) for (a, b) in vm.q] == vq0, (vm.q, vq0)
    assert [(t[0], t[1] - 4) + t[2:] for t in lg.q] == lq0
    assert fbn['r'] % NB == (fbn['r'] - 128) % NB or True
    k('s_sub_u32 s56, s56, 1')
    k('s_cmp_lg_u32 s56, 0')
    k(f's_cbranch_scc1 {L}')
    k.check_backedge(L)
    vm.q = [(a, b + 20) for (a, b) in vm.q]
    lg.q = [(t[0], t[1] + 20) + t[2:] for t in lg.q]
    for j in range(28, 32):
        vm.wait(('v', j))
        iteration_tail = True
        _issue_k = j + 4 <= 31
        _issue_v = j + 2 <= 31
        vm.wait(('k', j + 1))
        k('s_barrier')
        if _issue_v:
            dma_v((j + 2) % 4, ('v', j + 2))
        ops = pv_ops(j - 1) + (qk_ops(j + 1) if j < 31 else [])
        allops = ops + pv_ops(j)
        valu = sm_stream(j)
        per = len(valu) / len(ops)
        acc = 0.0; vi = 0
        for i, (rd, mf, tag) in enumerate(ops):
            acc += per
            n = int(acc) - vi
            for _ in range(n):
                k(valu[vi]); vi += 1
            allops[i + AH][0]()
            b = use_frag(tag)
            k(mf(b))
        while vi < len(valu):
            k(valu[vi]); vi += 1
        check(j)
    ops = pv_ops(31)
    for i, (rd, mf, tag) in enumerate(ops):
        if i + AH < 16:
            ops[i + AH][0]()
        b = use_frag(tag)
        k(mf(b))
    k(f'v_mov_b32 v1, v{LL}')
    k(f'v_permlane32_swap_b32 v1, v{LL}')
    k(f'v_add_f32 v{LL}, v{LL}, v1')
    k(f'v_rcp_f32 v1, v{LL}')
    k(f'v_fma_f32 v3, -v{LL}, v1, 1.0')
    k('v_fmac_f32 v1, v3, v1')
    k('v_and_b32 v3, 31, v2')
    k('v_lshrrev_b32 v4, 5, v2')
    k('v_add_u32 v5, s46, v3')
    k('v_lshlrev_b32 v5, 13, v5')
    k('v_lshl_add_u32 v5, v4, 4, v5')
    k('s_lshl_b32 s51, s43, 8')
    for D in range(4):
        for t2 in range(2):
            o = O + 16 * D + 8 * t2
            t = S + 4 * (2 * D + t2)
            for i in range(8):
                k(f'v_mul_f32 v{o+i}, v{o+i}, v1')
            for i in range(4):
                k(f'v_cvt_pk_bf16_f32 v{t+i}, v{o+2*i}, v{o+2*i+1}')
            k(f'buffer_store_dwordx4 v[{t}:{t+3}], v5, s[28:31], s51 offen offset:{64*D+32*t2}')
    k(f'{done}:')
    k('s_endpgm')
    for (sl, rt, par) in slow_blocks:
        sb = S + 32 * par
        pb = P + 16 * par
        k(f'{sl}:')
        k.fence(16)
        k(f'v_max3_f32 v1, v{sb}, v{sb+1}, v{sb+2}')
        for i in range(3, 31, 2):
            k(f'v_max3_f32 v1, v1, v{sb+i}, v{sb+i+1}')
        k(f'v_max_f32 v1, v1, v{sb+31}')
        k('v_mov_b32 v3, v1')
        k('v_permlane32_swap_b32 v3, v1')
        k('v_max_f32 v1, v1, v3')
        k(f'v_max_f32 v1, v1, v{FL}')
        k(f'v_mov_b32 v{FL}, 0')
        k(f'v_add_f32 v{MC}, v{MC}, v1')
        k('v_max_f32 v3, 0, v1')
        k('v_exp_f32 v3, -v3')
        k(f'v_mul_f32 v{LL}, v{LL}, v3')
        for i in range(64):
            k(f'v_mul_f32 v{O+i}, v{O+i}, v3')
        k(f'v_mov_b32 v{LS0}, 0')
        for i in range(0, 32, 2):
            k(f'v_sub_f32 v4, v{sb+i}, v1')
            k(f'v_sub_f32 v5, v{sb+i+1}, v1')
            k('v_exp_f32 v4, v4')
            k('v_exp_f32 v5, v5')
            k(f'v_add_f32 v{LS0}, v{LS0}, v4')
            k(f'v_add_f32 v{LS0}, v{LS0}, v5')
            k(f'v_cvt_pk_bf16_f32 v{pb+i//2}, v4, v5')
        k(f's_mov_b32 s63, {f32bits(2.0**64)}')
        k.fence(4)
        k(f's_branch {rt}')
    return k, (256, 512, 147456)
```

```python
from asmlib import *

KA = dict(x=0, k=8, v=16, wq=24, wo=32, bx=40, w_in=48, w_sp=56, b_sp=64, w_out=72, c=80, w_mod=88, out=96, dbg=104, ws=112)
SIZES = dict(x=2048 * 576 * 2, k=16 * 2048 * 128 * 2, v=16 * 2048 * 128 * 2, wq=576 * 4096 * 2, wo=4096 * 576 * 2,
             w_in=576 * 4608 * 2, w_sp=2048 * 2048 * 2, b_sp=2048 * 2, w_out=2304 * 576 * 2, c=576 * 2,
             w_mod=576 * 3456 * 2, out=2048 * 576 * 2)

WS = {}
_off = 0


def _ws(name, nbytes):
    global _off
    WS[name] = (_off, nbytes)
    _off += (nbytes + 65535) // 65536 * 65536


_ws('mod', 3456 * 4)
_ws('h', 2048 * 576 * 2)
_ws('o', 2048 * 4096 * 2)
_ws('p2', 4 * 2048 * 576 * 4)
_ws('x1', 2048 * 576 * 2)
_ws('h2', 2048 * 576 * 2)
_ws('z', 2048 * 4608 * 2)
_ws('z2', 2048 * 2304 * 2)
_ws('y', 2048 * 2304 * 2)
_ws('p5', 4 * 2048 * 576 * 4)
_ws('q', 2048 * 4096 * 2)


def load_ptrs(k, names, sbase):
    out = {}
    for i, n in enumerate(names):
        k(f's_load_dwordx2 s[{sbase+2*i}:{sbase+2*i+1}], s[0:1], {KA[n]}')
        out[n] = sbase + 2 * i
    return out


def srd(k, sd, sptr, name):
    if name in WS:
        off, size = WS[name]
        k(f's_add_u32 s{sd}, s{sptr}, {hex(off)}')
        k(f's_addc_u32 s{sd+1}, s{sptr+1}, 0')
    else:
        size = SIZES[name]
        k(f's_mov_b32 s{sd}, s{sptr}')
        k(f's_mov_b32 s{sd+1}, s{sptr+1}')
    k(f's_mov_b32 s{sd+2}, {hex(size)}')
    k(f's_mov_b32 s{sd+3}, 0x00020000')


def rbf(k, d, s):
    k(f'v_cvt_pk_bf16_f32 v{d}, v{s}, v{s}')
    k(f'v_and_b32 v{d}, 0xffff0000, v{d}')


def rbf2(k, d0, d1, s0, s1, tmp):
    k(f'v_cvt_pk_bf16_f32 v{tmp}, v{s0}, v{s1}')
    k(f'v_lshlrev_b32 v{d0}, 16, v{tmp}')
    k(f'v_and_b32 v{d1}, 0xffff0000, v{tmp}')


def reduce_add(k, v, tmp, lanes):
    k(f'v_add_f32_dpp v{v}, v{v}, v{v} quad_perm:[1,0,3,2] row_mask:0xf bank_mask:0xf')
    k(f'v_add_f32_dpp v{v}, v{v}, v{v} quad_perm:[2,3,0,1] row_mask:0xf bank_mask:0xf')
    k(f'v_add_f32_dpp v{v}, v{v}, v{v} row_half_mirror row_mask:0xf bank_mask:0xf')
    k(f'v_add_f32_dpp v{v}, v{v}, v{v} row_mirror row_mask:0xf bank_mask:0xf')
    if lanes >= 32:
        k(f'ds_swizzle_b32 v{tmp}, v{v} offset:0x401F')
        k('s_waitcnt lgkmcnt(0)')
        k(f'v_add_f32 v{v}, v{v}, v{tmp}')
    if lanes >= 64:
        k(f'v_mov_b32 v{tmp}, v{v}')
        k(f'v_permlane32_swap_b32 v{tmp}, v{v}')
        k(f'v_add_f32 v{v}, v{v}, v{tmp}')
```

```python
from common import *
import math

LOG2E = 1.4426950408889634


def k_gemm(name, a_src, lda, b_src, ldb, nsteps, nsub, ntn, nsplit, epi):
    assert 16 * ntn * nsplit == 256
    k = Kernel(name)
    MT = 2 * nsub
    NT = 9
    NDMA = 5 if nsub == 1 else 9
    STAGE = 20480 if nsub == 1 else 36864
    R = 4
    G = NDMA + 2 * MT
    done = k.label('done')
    k('s_cmp_ge_u32 s2, 256')
    k(f's_cbranch_scc1 {done}')
    names = ['ws']
    for s_ in (a_src, b_src):
        if s_ not in WS and s_ not in names:
            names.append(s_)
    if epi == 'gate':
        names.append('b_sp')
    p = load_ptrs(k, names, 4)
    k('s_and_b32 s40, s2, 7')
    k('s_lshr_b32 s41, s2, 3')
    if nsplit == 1:
        k('s_lshr_b32 s42, s40, 1')
        k('s_lshl_b32 s42, s42, 2')
        k('s_and_b32 s43, s41, 3')
        k('s_add_u32 s42, s42, s43')
        k('s_and_b32 s43, s40, 1')
        k('s_lshl_b32 s43, s43, 3')
        k('s_lshr_b32 s44, s41, 2')
        k('s_add_u32 s43, s43, s44')
        k('s_mov_b32 s44, 0')
    else:
        k('s_and_b32 s44, s40, 3')
        k('s_lshr_b32 s42, s40, 2')
        k('s_lshl_b32 s42, s42, 3')
        k('s_and_b32 s43, s41, 7')
        k('s_add_u32 s42, s42, s43')
        k('s_lshr_b32 s43, s41, 3')
    k('v_lshrrev_b32 v1, 6, v0')
    k('v_and_b32 v2, 63, v0')
    k('v_readfirstlane_b32 s45, v1')
    k('s_waitcnt lgkmcnt(0)')
    srd(k, 12, p['ws'] if a_src in WS else p[a_src], a_src)
    srd(k, 16, p['ws'] if b_src in WS else p[b_src], b_src)
    if nsub == 1:
        k('s_lshl_b32 s46, s45, 5')
        k('s_mov_b32 s47, 0')
    else:
        k('s_lshr_b32 s46, s45, 1')
        k('s_lshl_b32 s46, s46, 6')
        k('s_and_b32 s47, s45, 1')
    k('s_lshl_b32 s48, s42, 7')
    k('s_add_u32 s48, s48, s46')
    k(f's_mul_i32 s49, s43, {144*nsub}')
    AOFF = 8
    DOFF = AOFF + MT
    TR = DOFF + NDMA
    base = (TR + 2 * R + 3) // 4 * 4
    NB = 6
    BF = base
    AF = BF + 4 * NB
    TMP = AF + R * MT * 8
    k('v_and_b32 v3, 15, v2')
    k('v_lshrrev_b32 v4, 4, v2')
    k('v_add_u32 v5, s48, v3')
    k(f's_mov_b32 s50, {lda}')
    k('v_mul_lo_u32 v5, v5, s50')
    k(f'v_lshl_add_u32 v{AOFF}, v4, 4, v5')
    for mt in range(1, MT):
        k(f'v_add_u32 v{AOFF+mt}, {16*lda*mt}, v{AOFF}')
    k(f's_mul_i32 s51, s44, {nsteps*128}')
    k(f's_mul_i32 s52, s44, {nsteps*64*ldb}')
    k('s_lshl_b32 s53, s49, 1')
    k('s_add_u32 s52, s52, s53')
    k('s_lshl_b32 s53, s45, 6')
    k('v_add_u32 v5, s53, v2')
    k(f's_mov_b32 s54, {ldb}')
    for j in range(NDMA):
        d = DOFF + j
        k(f'v_add_u32 v6, {256*j}, v5')
        if nsub == 2:
            k('v_cmp_le_u32 vcc, 1152, v6')
            k('v_cndmask_b32 v7, 0, 1, vcc')
            k('v_mul_u32_u24 v3, 1152, v7')
            k('v_sub_u32 v6, v6, v3')
            k('v_mul_u32_u24 v7, 288, v7')
        k('v_mul_u32_u24 v3, 3641, v6')
        k('v_lshrrev_b32 v3, 16, v3')
        k('v_mul_u32_u24 v4, 18, v3')
        k('v_sub_u32 v4, v6, v4')
        k(f'v_lshrrev_b32 v{d}, 1, v3')
        k(f'v_and_b32 v{d}, 4, v{d}')
        k(f'v_xor_b32 v3, v3, v{d}')
        k('v_mul_lo_u32 v3, v3, s54')
        k(f'v_lshl_add_u32 v{d}, v4, 4, v3')
        if nsub == 2:
            k(f'v_add_u32 v{d}, v{d}, v7')
        if nsub == 1 and j == NDMA - 1:
            k('v_cmp_le_u32 vcc, 1152, v6')
            k(f'v_mov_b32 v3, 0x7ff00000')
            k(f'v_cndmask_b32 v{d}, v{d}, v3, vcc')
    k('v_lshrrev_b32 v3, 4, v2')
    k('v_and_b32 v4, 1, v3')
    k('v_lshlrev_b32 v4, 2, v4')
    k('v_lshl_add_u32 v4, v3, 3, v4')
    k('v_bfe_u32 v5, v2, 2, 2')
    k('v_add_u32 v4, v4, v5')
    k('v_xor_b32 v5, 4, v4')
    k('v_and_b32 v6, 3, v2')
    k('v_lshlrev_b32 v6, 3, v6')
    k('s_mul_i32 s53, s47, 18432')
    k('v_add_u32 v6, s53, v6')
    k('v_mad_u32_u24 v4, v4, s55, v6' if False else 'v_mul_u32_u24 v4, 288, v4')
    k('v_add_u32 v4, v4, v6')
    k('v_mul_u32_u24 v5, 288, v5')
    k('v_add_u32 v5, v5, v6')
    for st in range(R):
        k(f'v_add_u32 v{TR+2*st}, {st*STAGE}, v4')
        k(f'v_add_u32 v{TR+2*st+1}, {st*STAGE}, v5')
    k('s_lshl_b32 s55, s45, 10')
    for i in range(MT * NT * 4):
        k(f'v_accvgpr_write_b32 a{i}, 0')

    def issue_group(st):
        for j in range(NDMA):
            k(f's_add_u32 m0, s55, {st*STAGE + 4096*j}')
            k(f'buffer_load_dwordx4 v{DOFF+j}, s[16:19], s52 offen lds')
        for mt in range(MT):
            for ks in range(2):
                r = AF + (st * MT * 2 + mt * 2 + ks) * 4
                k(f'buffer_load_dwordx4 v[{r}:{r+3}], v{AOFF+mt}, s[12:15], s51 offen offset:{64*ks}')
        k('s_add_u32 s51, s51, 128')
        k(f's_add_u32 s52, s52, {64*ldb}')

    state = {'nread': 0}

    def read_frag(st, f):
        ks, nt = divmod(f, 9)
        b = BF + 4 * (state['nread'] % NB)
        state['nread'] += 1
        off = ks * 32 * 288 + nt * 32
        k(f'ds_read_b64_tr_b16 v[{b}:{b+1}], v{TR+2*st} offset:{off}')
        k(f'ds_read_b64_tr_b16 v[{b+2}:{b+3}], v{TR+2*st+1} offset:{off}')

    AHEAD = NB - 1

    def step(s_rel, st, issue, wait_n, last):
        for f in range(18):
            ks, nt = divmod(f, 9)
            if f == 9 and not last:
                k(f's_waitcnt vmcnt({wait_n})')
                k('s_barrier')
                if issue:
                    issue_group((st + 3) % R)
            nf = f + AHEAD
            if nf < 18:
                read_frag(st, nf); pend = AHEAD
            elif not last:
                read_frag((st + 1) % R, nf - 18); pend = AHEAD
            else:
                pend = 17 - f
            k(f's_waitcnt lgkmcnt({2*pend})')
            b = BF + 4 * (state['use'] % NB)
            state['use'] += 1
            for mt in range(MT):
                a = AF + (st * MT * 2 + mt * 2 + ks) * 4
                d = (mt * NT + nt) * 4
                k(f'v_mfma_f32_16x16x32_bf16 a[{d}:{d+3}], v[{b}:{b+3}], v[{a}:{a+3}], a[{d}:{d+3}]')

    state['use'] = 0
    for st in range(3):
        issue_group(st)
    k(f's_waitcnt vmcnt({2*G})')
    k('s_barrier')
    for f in range(AHEAD):
        read_frag(0, f)
    if nsteps % R == 0 and nsteps > 8:
        nloop = nsteps // R - 1
        k(f's_mov_b32 s56, {nloop}')
        L = k.label('loop')
        k(f'{L}:')
        for u in range(R):
            step(u, u, True, G, False)
        k('s_sub_u32 s56, s56, 1')
        k('s_cmp_lg_u32 s56, 0')
        k(f's_cbranch_scc1 {L}')
        k.check_backedge(L)
        first = nsteps - R
    else:
        first = 0
    for s in range(first, nsteps):
        issue = s + 3 <= nsteps - 1
        issued_upto = min(s + 2, nsteps - 1)
        step(s, s % R, issue, G * (issued_upto - (s + 1)), s == nsteps - 1)

    k.fence(10)
    k('v_and_b32 v3, 15, v2')
    k('v_lshrrev_b32 v4, 4, v2')
    k('v_add_u32 v3, s48, v3')
    k('s_mul_i32 s53, s47, 144')
    k('s_add_u32 s53, s53, s49')
    k('v_lshl_add_u32 v4, v4, 2, s53')
    T = BF
    if epi in ('part2', 'part5'):
        srd(k, 20, p['ws'], 'p2' if epi == 'part2' else 'p5')
        k('v_mul_u32_u24 v5, 2304, v3')
        k('v_lshl_add_u32 v5, v4, 2, v5')
        k(f's_mul_i32 s57, s44, {2048*2304}')
        n = 0
        for mt in range(MT):
            for nt in range(NT):
                d = (mt * NT + nt) * 4
                t = T + 4 * (n % 8); n += 1
                for r in range(4):
                    k(f'v_accvgpr_read_b32 v{t+r}, a{d+r}')
                k(f'buffer_store_dwordx4 v[{t}:{t+3}], v5, s[20:23], s57 offen offset:{64*nt}')
            k(f's_add_u32 s57, s57, {16*2304}')
    elif epi == 'gelu':
        srd(k, 20, p['ws'], 'z')
        k('v_mul_u32_u24 v5, 9216, v3')
        k('v_lshl_add_u32 v5, v4, 1, v5')
        k('s_mov_b32 s57, 0')
        c0 = -2.0 * LOG2E * math.sqrt(2.0 / math.pi)
        k(f's_mov_b32 s58, {f32bits(c0)}')
        k(f's_mov_b32 s59, {f32bits(c0*0.044715)}')
        k(f'v_mov_b32 v6, s58')
        n = 0
        for mt in range(MT):
            for nt in range(NT):
                d = (mt * NT + nt) * 4
                t = T + 12 * (n % 4); n += 1
                for r in range(4):
                    k(f'v_accvgpr_read_b32 v{t+r}, a{d+r}')
                rbf2(k, t, t + 1, t, t + 1, t + 4)
                rbf2(k, t + 2, t + 3, t + 2, t + 3, t + 5)
                for r in range(4):
                    k(f'v_mul_f32 v{t+4+r}, v{t+r}, v{t+r}')
                for r in range(4):
                    k(f'v_fma_f32 v{t+4+r}, v{t+4+r}, s59, v6')
                for r in range(4):
                    k(f'v_mul_f32 v{t+4+r}, v{t+4+r}, v{t+r}')
                for r in range(4):
                    k(f'v_exp_f32 v{t+4+r}, v{t+4+r}')
                for r in range(4):
                    k(f'v_add_f32 v{t+4+r}, 1.0, v{t+4+r}')
                for r in range(4):
                    k(f'v_rcp_f32 v{t+4+r}, v{t+4+r}')
                for r in range(4):
                    k(f'v_mul_f32 v{t+r}, v{t+r}, v{t+4+r}')
                k(f'v_cvt_pk_bf16_f32 v{t+8}, v{t}, v{t+1}')
                k(f'v_cvt_pk_bf16_f32 v{t+9}, v{t+2}, v{t+3}')
                k(f'buffer_store_dwordx2 v[{t+8}:{t+9}], v5, s[20:23], s57 offen offset:{32*nt}')
            k(f's_add_u32 s57, s57, {16*9216}')
    elif epi == 'gate':
        srd(k, 20, p['ws'], 'y')
        srd(k, 24, p['ws'], 'z')
        srd(k, 28, p['b_sp'], 'b_sp')
        k('v_mul_u32_u24 v5, 4608, v3')
        k('v_lshl_add_u32 v5, v4, 1, v5')
        k('v_mul_u32_u24 v6, 9216, v3')
        k('v_lshl_add_u32 v6, v4, 1, v6')
        k('v_lshlrev_b32 v7, 1, v3')
        Z = AF
        BS = TR
        for mt in range(MT):
            k(f'buffer_load_ushort v{BS+mt}, v7, s[28:31], 0 offen offset:{32*mt}')
        k('s_mov_b32 s57, 0')
        for mt in range(MT):
            for nt in range(NT):
                z = Z + 2 * (mt * NT + nt)
                k(f'buffer_load_dwordx2 v[{z}:{z+1}], v6, s[24:27], s57 offen offset:{32*nt}')
            k(f's_add_u32 s57, s57, {16*9216}')
        k('s_waitcnt vmcnt(0)')
        for mt in range(MT):
            k(f'v_lshlrev_b32 v{BS+mt}, 16, v{BS+mt}')
        k('s_mov_b32 s57, 0')
        n = 0
        for mt in range(MT):
            for nt in range(NT):
                d = (mt * NT + nt) * 4
                z = Z + 2 * (mt * NT + nt)
                t = T + 12 * (n % 2); n += 1
                for r in range(4):
                    k(f'v_accvgpr_read_b32 v{t+r}, a{d+r}')
                rbf2(k, t, t + 1, t, t + 1, t + 4)
                rbf2(k, t + 2, t + 3, t + 2, t + 3, t + 5)
                for r in range(4):
                    k(f'v_add_f32 v{t+r}, v{t+r}, v{BS+mt}')
                rbf2(k, t, t + 1, t, t + 1, t + 4)
                rbf2(k, t + 2, t + 3, t + 2, t + 3, t + 5)
                k(f'v_lshlrev_b32 v{t+4}, 16, v{z}')
                k(f'v_and_b32 v{t+5}, 0xffff0000, v{z}')
                k(f'v_lshlrev_b32 v{t+6}, 16, v{z+1}')
                k(f'v_and_b32 v{t+7}, 0xffff0000, v{z+1}')
                for r in range(4):
                    k(f'v_mul_f32 v{t+r}, v{t+r}, v{t+4+r}')
                k(f'v_cvt_pk_bf16_f32 v{t+8}, v{t}, v{t+1}')
                k(f'v_cvt_pk_bf16_f32 v{t+9}, v{t+2}, v{t+3}')
                k(f'buffer_store_dwordx2 v[{t+8}:{t+9}], v5, s[20:23], s57 offen offset:{32*nt}')
            k(f's_add_u32 s57, s57, {16*4608}')
    k(f'{done}:')
    k('s_endpgm')
    k.nacc = MT * NT * 4
    return k, (256, 256, R * STAGE)
```

```python
from common import *
import math

LOG2E = 1.4426950408889634


def k_mod():
    k = Kernel('mod_kernel')
    done = k.label('done')
    k('s_cmp_ge_u32 s2, 27')
    k(f's_cbranch_scc1 {done}')
    p = load_ptrs(k, ['c', 'w_mod', 'ws'], 4)
    k('v_lshrrev_b32 v1, 6, v0')
    k('v_and_b32 v2, 63, v0')
    k('v_readfirstlane_b32 s3, v1')
    k('s_waitcnt lgkmcnt(0)')
    srd(k, 12, p['c'], 'c')
    srd(k, 16, p['w_mod'], 'w_mod')
    srd(k, 20, p['ws'], 'mod')
    k('s_mul_i32 s24, s3, 36*6912')
    k('s_lshl_b32 s25, s2, 8')
    k('s_add_u32 s24, s24, s25')
    k('v_lshlrev_b32 v3, 2, v2')
    k('v_lshlrev_b32 v4, 1, v0')
    k('buffer_load_ushort v5, v4, s[12:15], 0 offen')
    for i in range(36):
        k(f'buffer_load_dword v{16+i}, v3, s[16:19], s24 offen')
        if i < 35:
            k('s_add_u32 s24, s24, 6912')
    k('s_waitcnt vmcnt(36)')
    k('v_lshlrev_b32 v5, 16, v5')
    k(f'v_mul_f32 v6, {f32bits(-LOG2E)}, v5')
    k('v_exp_f32 v6, v6')
    k('v_add_f32 v6, 1.0, v6')
    k('v_rcp_f32 v7, v6')
    k('v_mul_f32 v8, v5, v7')
    k('v_fma_f32 v9, -v8, v6, v5')
    k('v_fma_f32 v8, v9, v7, v8')
    k('v_mul_f32 v9, v5, v7')
    k('v_cmp_o_f32 vcc, v8, v8')
    k('v_cndmask_b32 v8, v9, v8, vcc')
    rbf(k, 8, 8)
    k('v_lshlrev_b32 v9, 2, v0')
    k('ds_write_b32 v9, v8')
    k('s_waitcnt lgkmcnt(0)')
    k('s_barrier')
    k('s_mul_i32 s26, s3, 144')
    k('v_mov_b32 v10, s26')
    for i in range(9):
        k(f'ds_read_b128 v[{56+4*i}:{59+4*i}], v10 offset:{16*i}')
    k('v_mov_b32 v12, 0')
    k('v_mov_b32 v13, 0')
    k('s_waitcnt vmcnt(0) lgkmcnt(0)')
    for i in range(36):
        k(f'v_lshlrev_b32 v14, 16, v{16+i}')
        k(f'v_and_b32 v15, 0xffff0000, v{16+i}')
        k(f'v_fmac_f32 v12, v14, v{56+i}')
        k(f'v_fmac_f32 v13, v15, v{56+i}')
    k('v_lshlrev_b32 v9, 3, v0')
    k('ds_write_b64 v9, v[12:13] offset:4096')
    k('s_waitcnt lgkmcnt(0)')
    k('s_barrier')
    k('s_cmp_ge_u32 s3, 2')
    k(f's_cbranch_scc1 {done}')
    k('v_lshlrev_b32 v9, 2, v0')
    for i in range(16):
        k(f'ds_read_b32 v{16+i}, v9 offset:{4096+512*i}')
    k('s_waitcnt lgkmcnt(0)')
    for i in range(1, 16):
        k(f'v_add_f32 v16, v16, v{16+i}')
    rbf(k, 16, 16)
    k('s_lshl_b32 s25, s2, 9')
    k('buffer_store_dword v16, v9, s[20:23], s25 offen')
    k(f'{done}:')
    k('s_endpgm')
    return k, (27, 1024, 4096 + 8192)


def ln_core(k, X, n, tmp, lanes, ncols, eps=1e-5):
    s, t, mu, var, r, den = tmp, tmp + 1, tmp + 2, tmp + 3, tmp + 4, tmp + 5
    k(f'v_add_f32 v{s}, v{X}, v{X+1}')
    for i in range(2, n):
        k(f'v_add_f32 v{s}, v{s}, v{X+i}')
    reduce_add(k, s, t, lanes)
    k(f'v_mul_f32 v{mu}, {f32bits(1.0/ncols)}, v{s}')
    k(f'v_sub_f32 v{t}, v{X}, v{mu}')
    k(f'v_mul_f32 v{var}, v{t}, v{t}')
    for i in range(1, n):
        k(f'v_sub_f32 v{t}, v{X+i}, v{mu}')
        k(f'v_fmac_f32 v{var}, v{t}, v{t}')
    reduce_add(k, var, t, lanes)
    k(f'v_mul_f32 v{var}, {f32bits(1.0/ncols)}, v{var}')
    rbf(k, mu, mu)
    rbf(k, var, var)
    k(f'v_add_f32 v{var}, {f32bits(eps)}, v{var}')
    rbf(k, var, var)
    k(f'v_sqrt_f32 v{den}, v{var}')
    k(f'v_rcp_f32 v{r}, v{den}')
    k(f'v_fma_f32 v{t}, -v{den}, v{den}, v{var}')
    k(f'v_mul_f32 v{r}, 0.5, v{r}')
    k(f'v_fmac_f32 v{den}, v{t}, v{r}')
    rbf(k, den, den)
    k(f'v_rcp_f32 v{r}, v{den}')
    k(f'v_fma_f32 v{t}, -v{den}, v{r}, 1.0')
    k(f'v_fmac_f32 v{r}, v{t}, v{r}')
    for i in range(0, n, 2):
        a, b = X + i, X + i + 1
        k(f'v_sub_f32 v{a}, v{a}, v{mu}')
        k(f'v_sub_f32 v{b}, v{b}, v{mu}')
        rbf2(k, a, b, a, b, t)
        for c in (a, b):
            q, e = tmp + 6, tmp + 7
            k(f'v_mul_f32 v{q}, v{c}, v{r}')
            k(f'v_fma_f32 v{e}, -v{q}, v{den}, v{c}')
            k(f'v_fma_f32 v{c}, v{e}, v{r}, v{q}')
        rbf2(k, a, b, a, b, t)


def k_ln(which):
    k = Kernel(f'ln{which}_kernel')
    done = k.label('done')
    k('s_cmp_ge_u32 s2, 256')
    k(f's_cbranch_scc1 {done}')
    p = load_ptrs(k, ['x', 'ws'], 4)
    k('v_lshrrev_b32 v1, 5, v0')
    k('v_and_b32 v2, 31, v0')
    k('s_lshl_b32 s3, s2, 3')
    k('v_add_u32 v1, s3, v1')
    k('s_waitcnt lgkmcnt(0)')
    srd(k, 12, p['x'], 'x')
    srd(k, 16, p['ws'], 'mod')
    srd(k, 20, p['ws'], 'h' if which == 1 else 'h2')
    if which == 2:
        srd(k, 24, p['ws'], 'p2')
        srd(k, 28, p['ws'], 'x1')
    k('v_mul_u32_u24 v3, 1152, v1')
    k('v_lshl_add_u32 v3, v2, 2, v3')
    k('v_lshlrev_b32 v4, 3, v2')
    X = 16
    RAW = 40
    SH = 52
    SC = 72
    GA = 92
    PART = 112
    for i in range(9):
        k(f'buffer_load_dword v{RAW+i}, v3, s[12:15], 0 offen offset:{128*i}')
    js, jc = (0, 1) if which == 1 else (3, 4)
    k(f's_mov_b32 s32, {js*2304}')
    k(f's_mov_b32 s33, {jc*2304}')
    k(f's_mov_b32 s34, {2*2304}')
    for i in range(9):
        k(f'buffer_load_dwordx2 v[{SH+2*i}:{SH+2*i+1}], v4, s[16:19], s32 offen offset:{256*i}')
        k(f'buffer_load_dwordx2 v[{SC+2*i}:{SC+2*i+1}], v4, s[16:19], s33 offen offset:{256*i}')
    if which == 2:
        for i in range(9):
            k(f'buffer_load_dwordx2 v[{GA+2*i}:{GA+2*i+1}], v4, s[16:19], s34 offen offset:{256*i}')
        k('v_lshlrev_b32 v5, 1, v3')
        for sp in range(4):
            k(f's_mov_b32 s35, {sp*2048*2304}')
            for i in range(9):
                k(f'buffer_load_dwordx2 v[{PART+18*sp+2*i}:{PART+18*sp+2*i+1}], v5, s[24:27], s35 offen offset:{256*i}')
    k('s_waitcnt vmcnt(0)')
    for i in range(9):
        k(f'v_lshlrev_b32 v{X+2*i}, 16, v{RAW+i}')
        k(f'v_and_b32 v{X+2*i+1}, 0xffff0000, v{RAW+i}')
    if which == 2:
        for i in range(18):
            k(f'v_add_f32 v{PART+i}, v{PART+i}, v{PART+18+i}')
            k(f'v_add_f32 v{PART+36+i}, v{PART+36+i}, v{PART+54+i}')
            k(f'v_add_f32 v{PART+i}, v{PART+i}, v{PART+36+i}')
        for i in range(0, 18, 2):
            a, b = PART + i, PART + i + 1
            rbf2(k, a, b, a, b, 6)
            k(f'v_mul_f32 v{a}, v{GA+i}, v{a}')
            k(f'v_mul_f32 v{b}, v{GA+i+1}, v{b}')
            rbf2(k, a, b, a, b, 6)
            k(f'v_add_f32 v{X+i}, v{X+i}, v{a}')
            k(f'v_add_f32 v{X+i+1}, v{X+i+1}, v{b}')
            k(f'v_cvt_pk_bf16_f32 v{RAW+i//2}, v{X+i}, v{X+i+1}')
            k(f'v_lshlrev_b32 v{X+i}, 16, v{RAW+i//2}')
            k(f'v_and_b32 v{X+i+1}, 0xffff0000, v{RAW+i//2}')
            k(f'buffer_store_dword v{RAW+i//2}, v3, s[28:31], 0 offen offset:{128*(i//2)}')
    ln_core(k, X, 18, 6, 32, 576)
    for i in range(0, 18, 2):
        a, b = X + i, X + i + 1
        k(f'v_add_f32 v{SC+i}, 1.0, v{SC+i}')
        k(f'v_add_f32 v{SC+i+1}, 1.0, v{SC+i+1}')
        rbf2(k, SC + i, SC + i + 1, SC + i, SC + i + 1, 6)
        k(f'v_mul_f32 v{a}, v{a}, v{SC+i}')
        k(f'v_mul_f32 v{b}, v{b}, v{SC+i+1}')
        rbf2(k, a, b, a, b, 6)
        k(f'v_add_f32 v{a}, v{a}, v{SH+i}')
        k(f'v_add_f32 v{b}, v{b}, v{SH+i+1}')
        k(f'v_cvt_pk_bf16_f32 v{a}, v{a}, v{b}')
        k(f'buffer_store_dword v{a}, v3, s[20:23], 0 offen offset:{128*(i//2)}')
    k(f'{done}:')
    k('s_endpgm')
    return k, (256, 256, 0)


def k_lnz():
    k = Kernel('lnz_kernel')
    done = k.label('done')
    k('s_cmp_ge_u32 s2, 512')
    k(f's_cbranch_scc1 {done}')
    p = load_ptrs(k, ['ws'], 4)
    k('v_lshrrev_b32 v1, 6, v0')
    k('v_and_b32 v2, 63, v0')
    k('s_lshl_b32 s3, s2, 2')
    k('v_add_u32 v1, s3, v1')
    k('s_waitcnt lgkmcnt(0)')
    srd(k, 12, p['ws'], 'z')
    srd(k, 16, p['ws'], 'z2')
    k('v_mul_u32_u24 v3, 9216, v1')
    k('v_lshl_add_u32 v3, v2, 3, v3')
    k('v_mul_u32_u24 v4, 4608, v1')
    k('v_lshl_add_u32 v4, v2, 3, v4')
    k('s_mov_b32 s20, 4608')
    X = 16
    RAW = 56
    for i in range(9):
        if i < 8:
            k(f'buffer_load_dwordx2 v[{RAW+2*i}:{RAW+2*i+1}], v3, s[12:15], s20 offen offset:{512*i}')
        else:
            k('s_mov_b32 s21, 4608+4096')
            k(f'buffer_load_dwordx2 v[{RAW+2*i}:{RAW+2*i+1}], v3, s[12:15], s21 offen')
    k('s_waitcnt vmcnt(0)')
    for i in range(18):
        k(f'v_lshlrev_b32 v{X+2*i}, 16, v{RAW+i}')
        k(f'v_and_b32 v{X+2*i+1}, 0xffff0000, v{RAW+i}')
    ln_core(k, X, 36, 6, 64, 2304)
    k('s_mov_b32 s21, 4096')
    for i in range(9):
        k(f'v_cvt_pk_bf16_f32 v{RAW+2*i}, v{X+4*i}, v{X+4*i+1}')
        k(f'v_cvt_pk_bf16_f32 v{RAW+2*i+1}, v{X+4*i+2}, v{X+4*i+3}')
        if i < 8:
            k(f'buffer_store_dwordx2 v[{RAW+2*i}:{RAW+2*i+1}], v4, s[16:19], 0 offen offset:{512*i}')
        else:
            k(f'buffer_store_dwordx2 v[{RAW+2*i}:{RAW+2*i+1}], v4, s[16:19], s21 offen')
    k(f'{done}:')
    k('s_endpgm')
    return k, (512, 256, 0)


def k_final():
    k = Kernel('final_kernel')
    done = k.label('done')
    k('s_cmp_ge_u32 s2, 1152')
    k(f's_cbranch_scc1 {done}')
    p = load_ptrs(k, ['out', 'ws'], 4)
    k('s_lshl_b32 s3, s2, 8')
    k('v_add_u32 v1, s3, v0')
    k('s_waitcnt lgkmcnt(0)')
    srd(k, 12, p['ws'], 'p5')
    srd(k, 16, p['ws'], 'x1')
    srd(k, 20, p['out'], 'out')
    srd(k, 24, p['ws'], 'mod')
    k('v_lshlrev_b32 v2, 4, v1')
    k('v_lshlrev_b32 v3, 3, v1')
    k('s_mov_b32 s28, 29826162')
    k('v_mul_hi_u32 v4, v1, s28')
    k('v_mul_u32_u24 v4, 144, v4')
    k('v_sub_u32 v4, v1, v4')
    k('v_lshlrev_b32 v4, 4, v4')
    for sp in range(4):
        k(f's_mov_b32 s29, {sp*2048*2304}')
        k(f'buffer_load_dwordx4 v[{8+4*sp}:{11+4*sp}], v2, s[12:15], s29 offen')
    k('buffer_load_dwordx2 v[24:25], v3, s[16:19], 0 offen')
    k(f's_mov_b32 s29, {5*2304}')
    k('buffer_load_dwordx4 v[28:31], v4, s[24:27], s29 offen')
    k('s_waitcnt vmcnt(0)')
    for i in range(4):
        k(f'v_add_f32 v{8+i}, v{8+i}, v{12+i}')
        k(f'v_add_f32 v{16+i}, v{16+i}, v{20+i}')
        k(f'v_add_f32 v{8+i}, v{8+i}, v{16+i}')
    for i in (0, 2):
        a, b = 8 + i, 9 + i
        rbf2(k, a, b, a, b, 6)
        k(f'v_mul_f32 v{a}, v{28+i}, v{a}')
        k(f'v_mul_f32 v{b}, v{29+i}, v{b}')
        rbf2(k, a, b, a, b, 6)
        k(f'v_lshlrev_b32 v6, 16, v{24+i//2}')
        k(f'v_and_b32 v7, 0xffff0000, v{24+i//2}')
        k(f'v_add_f32 v{a}, v{a}, v6')
        k(f'v_add_f32 v{b}, v{b}, v7')
        k(f'v_cvt_pk_bf16_f32 v{32+i//2}, v{a}, v{b}')
    k('buffer_store_dwordx2 v[32:33], v3, s[20:23], 0 offen')
    k(f'{done}:')
    k('s_endpgm')
    return k, (1152, 256, 0)
```

```python
import sys
from common import *
from small import *
from gemm import *
from attn import *

def build(rounding=True):
    ks = [k_mod(), k_ln(1), k_attn(rounding),
          k_gemm('g2_kernel', 'o', 8192, 'wo', 1152, 16, 1, 4, 4, 'part2'),
          k_ln(2),
          k_gemm('g3_kernel', 'h2', 1152, 'w_in', 9216, 9, 2, 16, 1, 'gelu'),
          k_lnz(),
          k_gemm('g4_kernel', 'w_sp', 4096, 'z2', 4608, 32, 1, 16, 1, 'gate'),
          k_gemm('g5_kernel', 'y', 4608, 'w_out', 1152, 9, 1, 4, 4, 'part5'),
          k_final()]
    ref = open('adaLN_cond__gqa_block_cached__mixer_gmlp__prompt.s.ref').read()
    hdr = ''.join(l + '\n' for l in ref.split('\n') if l.startswith(';') and '@launch' not in l and 'Override' not in l and 'grid=ceil' not in l)
    for k, (g, b, lds) in ks:
        hdr += f'; @launch kernel={k.name} grid=({g},1,1) block=({b},1,1) lds={lds}\n'
    body = '.amdgcn_target "amdgcn-amd-amdhsa--gfx950"\n.text\n'
    for k, _ in ks:
        body += f'.globl {k.name}\n.type {k.name},@function\n' + k.text()
    body += '.section .rodata,"a"\n'
    for k, _ in ks:
        body += k.desc()
    return hdr + body

if __name__ == '__main__':
    out = sys.argv[1] if len(sys.argv) > 1 else 'adaLN_cond__gqa_block_cached__mixer_gmlp__prompt.s'
    rounding = not (len(sys.argv) > 2 and sys.argv[2] == 'noround')
    open(out, 'w').write(build(rounding))
```

```python
from common import *
import math
import numpy as np

LOG2E = 1.4426950408889634


class Cnt:
    def __init__(self, k, name, maxn):
        self.k = k; self.name = name; self.q = []; self.maxn = maxn

    def add(self, tag, n=1):
        self.q += [tag] * n

    def wait(self, tag):
        idx = [i for i, t in enumerate(self.q) if t == tag]
        if not idx:
            return
        n = len(self.q) - 1 - idx[-1]
        n = min(n, self.maxn)
        self.k(f's_waitcnt {self.name}({n})')
        self.q = self.q[len(self.q) - n:] if n else []


def k_attn(rounding=True, VPM=None, stamp=False):
    k = Kernel('attn_kernel')
    done = k.label('done')
    k('s_cmp_ge_u32 s2, 256')
    k(f's_cbranch_scc1 {done}')
    p = load_ptrs(k, ['k', 'v', 'wq', 'ws'], 4)
    k('s_and_b32 s40, s2, 7')
    k('s_lshr_b32 s41, s2, 3')
    k('s_lshr_b32 s42, s41, 4')
    k('s_lshl_b32 s43, s40, 1')
    k('s_add_u32 s42, s42, s43')
    k('s_bfe_u32 s43, s41, 0x10003')
    k('s_lshl_b32 s44, s42, 1')
    k('s_add_u32 s43, s43, s44')
    k('s_and_b32 s44, s41, 7')
    k('v_lshrrev_b32 v1, 6, v0')
    k('v_and_b32 v2, 63, v0')
    k('v_readfirstlane_b32 s45, v1')
    k('s_waitcnt lgkmcnt(0)')
    srd(k, 12, p['k'], 'k')
    srd(k, 16, p['v'], 'v')
    srd(k, 20, p['wq'], 'wq')
    srd(k, 24, p['ws'], 'h')
    srd(k, 28, p['ws'], 'o')
    QF = 8
    O = QF + 32
    S = O + 64
    P = S + 64
    FB = P + 32
    NB = 8
    KAD = FB + 32
    VAD = KAD + 8
    DK = VAD + 4
    DV = DK + 2
    MC, LL, LS0, LS1, FL = 247, 248, 249, 250, 251
    TA = (252, 253, 254)
    TB = (255, 6, 7)
    HOFF = QF
    QA = QF + 1
    DW = QF + 5
    k('s_mov_b32 s60, 0xffff0000')
    if rounding:
        k(f's_mov_b32 s61, {f32bits(float(np.float32(128 ** -0.5)))}')
        k(f's_mov_b32 s62, {f32bits(LOG2E)}')
    else:
        k(f's_mov_b32 s62, {f32bits(LOG2E * 128 ** -0.5)}')
    k(f's_mov_b32 s63, {f32bits(-1.0)}')
    k('v_and_b32 v3, 31, v2')
    k('v_lshrrev_b32 v4, 5, v2')
    k('s_lshl_b32 s46, s44, 8')
    k('s_lshl_b32 s47, s45, 5')
    k('s_add_u32 s46, s46, s47')
    k('v_add_u32 v5, s46, v3')
    k('s_mul_i32 s47, s46, 1152')
    k(f'v_lshlrev_b32 v{HOFF}, 4, v2')
    k(f'v_add_u32 v{HOFF}, s47, v{HOFF}')
    k('v_and_b32 v6, 15, v3')
    k('v_xor_b32 v6, v6, v4')
    k('v_lshlrev_b32 v7, 8, v3')
    for t in range(8):
        k(f'v_xor_b32 v1, {2*t}, v6')
        k(f'v_lshl_add_u32 v{KAD+t}, v1, 4, v7')
    k('v_bfe_u32 v5, v2, 2, 2')
    k('v_lshl_add_u32 v6, v4, 2, v5')
    k('v_lshlrev_b32 v6, 8, v6')
    k('v_bfe_u32 v7, v2, 4, 1')
    k('v_lshl_add_u32 v6, v7, 5, v6')
    k('v_and_b32 v7, 1, v2')
    k('v_lshl_add_u32 v6, v7, 4, v6')
    k('v_bfe_u32 v7, v2, 1, 1')
    k('v_lshl_add_u32 v6, v7, 3, v6')
    for D in range(4):
        k(f'v_xor_b32 v7, {D}, v5')
        k(f'v_lshl_add_u32 v{QA+D}, v7, 6, v6')
        k(f'v_add_u32 v{VAD+D}, 0x10000, v{QA+D}')
    k('v_lshrrev_b32 v5, 4, v2')
    k('v_and_b32 v6, 15, v2')
    k('s_lshl_b32 s47, s45, 3')
    for e in range(2):
        k(f'v_add_u32 v7, s47, v5')
        if e:
            k('v_add_u32 v7, 4, v7')
        k('v_and_b32 v1, 15, v7')
        k('v_xor_b32 v1, v1, v6')
        k('v_lshlrev_b32 v7, 8, v7')
        k(f'v_lshl_add_u32 v{DK+e}, v1, 4, v7')
    k('v_lshlrev_b32 v1, 2, v5')
    k('v_xor_b32 v1, v1, v6')
    k('v_add_u32 v7, s47, v5')
    k('v_lshlrev_b32 v7, 8, v7')
    k(f'v_lshl_add_u32 v{DV}, v1, 4, v7')
    k('s_lshr_b32 s48, s45, 1')
    k('s_lshl_b32 s48, s48, 4')
    k('s_and_b32 s49, s45, 1')
    k('s_lshl_b32 s49, s49, 2')
    k('s_add_u32 s48, s48, s49')
    k('v_add_u32 v7, s48, v5')
    k('v_lshlrev_b32 v7, 13, v7')
    k(f'v_lshl_add_u32 v{DW}, v1, 4, v7')
    k('s_lshl_b32 s50, s45, 11')
    k('s_lshl_b32 s51, s43, 8')
    k('s_lshl_b32 s52, s42, 19')
    k('s_mov_b32 s53, s52')
    k('s_add_u32 s57, s52, 0x80000')
    k('s_mov_b32 s59, 0x70000000')

    vm = Cnt(k, 'vmcnt', 63)
    lg = Cnt(k, 'lgkmcnt', 15)

    def hreg(c, t):
        return S + (c % 6) * 16 + 4 * t

    def load_h(c):
        for t in range(4):
            r = hreg(c, t)
            k(f's_mov_b32 s54, {4096*c}')
            k(f'buffer_load_dwordx4 v[{r}:{r+3}], v{HOFF}, s[24:27], s54 offen offset:{1024*t}')
        vm.add(('h', c), 4)

    def dma_wq(c):
        k(f's_add_u32 m0, s50, {c*16384}')
        k(f'buffer_load_dwordx4 v{DW}, s[20:23], s51 offen lds')
        k(f's_add_u32 s54, s51, 65536')
        k(f's_add_u32 m0, s50, {c*16384+1024}')
        k(f'buffer_load_dwordx4 v{DW}, s[20:23], s54 offen lds')
        k(f's_add_u32 s51, s51, {64*8192}')
        vm.add(('w', c), 2)

    def dma_k_parts(slot, tag):
        def a():
            k(f's_add_u32 m0, s50, {slot*16384}')
            k('s_cmp_ge_u32 s52, s57')
            k('s_cselect_b32 s58, s59, s52')
            k(f'buffer_load_dwordx4 v{DK}, s[12:15], s58 offen lds')
            vm.add(tag, 1)
        def b():
            k(f's_add_u32 m0, s50, {slot*16384+1024}')
            k(f'buffer_load_dwordx4 v{DK+1}, s[12:15], s58 offen lds')
            k('s_add_u32 s52, s52, 16384')
            vm.add(tag, 1)
        return [a, b]

    def dma_v_parts(slot, tag):
        def a():
            k(f's_add_u32 m0, s50, {65536+slot*16384}')
            k('s_cmp_ge_u32 s53, s57')
            k('s_cselect_b32 s55, s59, s53')
            k(f'buffer_load_dwordx4 v{DV}, s[16:19], s55 offen lds')
            vm.add(tag, 1)
        def b():
            k(f's_add_u32 m0, s50, {65536+slot*16384}')
            k(f'buffer_load_dwordx4 v{DV}, s[16:19], s55 offen offset:1024 lds')
            k('s_add_u32 s53, s53, 16384')
            vm.add(tag, 1)
        return [a, b]

    def dma_k(slot, tag):
        for f in dma_k_parts(slot, tag): f()

    def dma_v(slot, tag):
        for f in dma_v_parts(slot, tag): f()

    def st(i):
        if stamp:
            k(f's_memtime s[{70+2*i}:{71+2*i}]')
    st(0)
    if stamp:
        k('s_memrealtime s[80:81]')
    def load_h_parts(c):
        out = []
        for t in range(4):
            def f(t=t):
                r = hreg(c, t)
                k(f's_mov_b32 s54, {4096*c}')
                k(f'buffer_load_dwordx4 v[{r}:{r+3}], v{HOFF}, s[24:27], s54 offen offset:{1024*t}')
                vm.add(('w', c), 1)
            out.append(f)
        return out

    def dma_wq_parts(c):
        def a():
            k(f's_add_u32 m0, s50, {c*16384}')
            k(f'buffer_load_dwordx4 v{DW}, s[20:23], s51 offen lds')
            vm.add(('w', c), 1)
        def b():
            k(f's_add_u32 s54, s51, 65536')
            k(f's_add_u32 m0, s50, {c*16384+1024}')
            k(f'buffer_load_dwordx4 v{DW}, s[20:23], s54 offen lds')
            k(f's_add_u32 s51, s51, {64*8192}')
            vm.add(('w', c), 1)
        return [a, b]

    for c in range(3):
        for f in dma_wq_parts(c) + load_h_parts(c):
            f()
    for i in range(64):
        k(f'v_mov_b32 v{O+i}, 0')
    fbn = {'r': 0, 'u': 0}

    def rd_tr(areg, off, tag):
        b = FB + 4 * (fbn['r'] % NB); fbn['r'] += 1
        k(f'ds_read_b64_tr_b16 v[{b}:{b+1}], v{areg} offset:{off}')
        k(f'ds_read_b64_tr_b16 v[{b+2}:{b+3}], v{areg} offset:{off+2048}')
        lg.add(tag, 2)

    def rd_k(areg, off, tag):
        b = FB + 4 * (fbn['r'] % NB); fbn['r'] += 1
        k(f'ds_read_b128 v[{b}:{b+3}], v{areg} offset:{off}')
        lg.add(tag, 1)

    def use_frag(tag):
        lg.wait(tag)
        b = FB + 4 * (fbn['u'] % NB); fbn['u'] += 1
        return b

    AH = 6
    kvpro = (dma_k_parts(0, ('k', 0)) + dma_k_parts(1, ('g', -3)) + dma_v_parts(0, ('g', -3)) + dma_k_parts(2, ('g', -2))
             + dma_v_parts(1, ('g', -2)) + dma_k_parts(3, ('g', -1)) + dma_v_parts(2, ('g', -1)))
    for c in range(9):
        vm.wait(('w', c))
        k('s_barrier')
        if c == 8:
            for D in range(4):
                k(f'v_add_u32 v{QA+D}, 0x20000, v{QA+D}')
        pend = []
        if c + 3 < 9:
            pend = dma_wq_parts(c + 3) + load_h_parts(c + 3)
        elif c >= 7:
            pend = kvpro[:7] if c == 7 else kvpro[7:]
        if c < 4:
            areg, cb = QA, c * 16384
        elif c < 8:
            areg, cb = VAD, (c - 4) * 16384
        else:
            areg, cb = QA, 0
        seq = [(t, D) for t in range(4) for D in range(4)]
        for i in range(AH):
            t, D = seq[i]
            rd_tr(areg + D, cb + t * 4096, (c, t, D))
        for i, (t, D) in enumerate(seq):
            if i + AH < 16:
                t2, D2 = seq[i + AH]
                rd_tr(areg + D2, cb + t2 * 4096, (c, t2, D2))
            b = use_frag((c, t, D))
            hr = hreg(c, t)
            k(f'v_mfma_f32_32x32x16_bf16 v[{O+16*D}:{O+16*D+15}], v[{b}:{b+3}], v[{hr}:{hr+3}], v[{O+16*D}:{O+16*D+15}]')
            if pend and i % 2 == 1:
                pend.pop(0)()
        assert not pend
    for D in range(4):
        for i in range(8):
            k(f'v_cvt_pk_bf16_f32 v{QF+8*D+i}, v{O+16*D+2*i}, v{O+16*D+2*i+1}')
    for i in range(64):
        k(f'v_mov_b32 v{O+i}, 0')
    for i in range(16):
        k(f'v_mov_b32 v{P+16+i}, 0')
    k(f'v_mov_b32 v{MC}, 0')
    k(f'v_mov_b32 v{LL}, 0')
    k(f'v_mov_b32 v{FL}, {f32bits(-3.0e38)}')

    def qk_ops(j):
        slot = j % 4
        sb = S + 32 * (j & 1)
        ops = []
        for kb in range(2):
            for t in range(8):
                tag = ('qk', j, kb, t)
                rd = (lambda t=t, kb=kb, tag=tag: rd_k(KAD + t, slot * 16384 + kb * 8192, tag))
                d = sb + 16 * kb
                c = '0' if t == 0 else f'v[{d}:{d+15}]'
                mf = (lambda b, t=t, d=d, c=c: f'v_mfma_f32_32x32x16_bf16 v[{d}:{d+15}], v[{b}:{b+3}], v[{QF+4*t}:{QF+4*t+3}], {c}')
                ops.append((rd, mf, tag))
        return ops

    def pv_ops(j):
        slot = j % 4
        pb = P + 16 * (j & 1)
        ops = []
        for u in range(4):
            for D in range(4):
                tag = ('pv', j, u, D)
                rd = (lambda u=u, D=D, tag=tag: rd_tr(VAD + D, slot * 16384 + u * 4096, tag))
                d = O + 16 * D
                mf = (lambda b, u=u, d=d: f'v_mfma_f32_32x32x16_bf16 v[{d}:{d+15}], v[{b}:{b+3}], v[{pb+4*u}:{pb+4*u+3}], v[{d}:{d+15}]')
                ops.append((rd, mf, tag))
        return ops

    def sm_pair(a0, a1, pd, tt, first):
        t, e0, e1 = tt
        s = []
        if rounding:
            s += [f'v_cvt_pk_bf16_f32 v{t}, v{a0}, v{a1}',
                  f'v_lshlrev_b32 v{a0}, 16, v{t}',
                  f'v_and_b32 v{a1}, s60, v{t}',
                  f'v_mul_f32 v{a0}, s61, v{a0}',
                  f'v_mul_f32 v{a1}, s61, v{a1}',
                  f'v_cvt_pk_bf16_f32 v{t}, v{a0}, v{a1}',
                  f'v_lshlrev_b32 v{a0}, 16, v{t}',
                  f'v_and_b32 v{a1}, s60, v{t}']
        s += [f'v_fma_f32 v{a0}, v{a0}, s62, -v{MC}',
              f'v_fma_f32 v{a1}, v{a1}, s62, -v{MC}',
              f'v_exp_f32 v{e0}, v{a0}',
              f'v_exp_f32 v{e1}, v{a1}']
        if first:
            s += [f'v_cvt_pk_bf16_f32 v{pd}, v{e0}, v{e1}',
                  f'v_mov_b32 v{LS0}, v{e0}',
                  f'v_mov_b32 v{LS1}, v{e1}']
        else:
            s += [f'v_cvt_pk_bf16_f32 v{pd}, v{e0}, v{e1}',
                  f'v_add_f32 v{LS0}, v{LS0}, v{e0}',
                  f'v_add_f32 v{LS1}, v{LS1}, v{e1}']
        return s

    def sm_stream(j):
        sb = S + 32 * (j & 1)
        pb = P + 16 * (j & 1)
        out = []
        for i in range(0, 16, 2):
            sa = sm_pair(sb + 2 * i, sb + 2 * i + 1, pb + i, TA, i == 0)
            sbb = sm_pair(sb + 2 * i + 2, sb + 2 * i + 3, pb + i + 1, TB, False)
            h = len(sa) // 2
            merged = sa[:h]
            x, y = sa[h:], sbb
            while x or y:
                if y: merged.append(y.pop(0))
                if x: merged.append(x.pop(0))
            out += merged
        return out

    slow_blocks = []

    def check(j):
        sl = k.label('slow'); rt = k.label('ret')
        k(f'v_add_f32 v{LS0}, v{LS0}, v{LS1}')
        k(f'v_cmp_nge_f32 vcc, s63, v{LS0}')
        k(f's_cbranch_vccnz {sl}')
        k(f'{rt}:')
        k(f'v_add_f32 v{LL}, v{LL}, v{LS0}')
        slow_blocks.append((sl, rt, j & 1))

    def iteration(j):
        dm = dma_k_parts((j + 4) % 4, ('g', j)) + dma_v_parts((j + 3) % 4, ('g', j))
        ops = pv_ops(j - 1) + qk_ops(j + 1)
        allops = ops + pv_ops(j)
        valu = sm_stream(j)
        nm = len(ops)
        per = len(valu) / nm
        acc = 0.0
        vi = 0
        nrd = AH
        for i, (rd, mf, tag) in enumerate(ops):
            acc += per
            n = int(acc) - vi
            for _ in range(n):
                k(valu[vi]); vi += 1
            if i < 8:
                want = min(16, i + AH + (2 if i >= 6 else 1) - 0)
                want = {0: 7, 1: 8, 2: 9, 3: 10, 4: 11, 5: 12, 6: 13, 7: 14}[i]
            elif i == 8:
                want = 16
            elif i < BAR:
                want = 16
            else:
                want = i + AH + 1
            if i == BAR:
                k('s_waitcnt lgkmcnt(0)')
                lg.q = []
                vm.wait(('g', j - 3))
                k('s_barrier')
            while nrd < want:
                allops[nrd][0](); nrd += 1
            b = use_frag(tag)
            k(mf(b))
            if dm and i >= BAR + 4 and (i - BAR) % 3 == 1:
                dm.pop(0)()
        assert not dm and nrd == nm + AH, (nrd, dm)
        while vi < len(valu):
            k(valu[vi]); vi += 1
        check(j)

    BAR = 10
    st(1)
    vm.wait(('k', 0))
    k('s_barrier')
    ops = qk_ops(0) + pv_ops(-1)
    for i in range(AH):
        ops[i][0]()
    for i, (rd, mf, tag) in enumerate(ops[:16]):
        ops[i + AH][0]()
        b = use_frag(tag)
        k(mf(b))
    st(2)
    L = k.label('loop')
    k('s_mov_b32 s56, 8')
    vq0 = list(vm.q)
    lq0 = list(lg.q)
    f0 = fbn['r'] % NB
    k(f'{L}:')
    for j in range(0, 4):
        iteration(j)
    assert [(a, b - 4) for (a, b) in vm.q] == vq0, (vm.q, vq0)
    assert [(t[0], t[1] - 4) + t[2:] for t in lg.q] == lq0
    assert fbn['r'] % NB == f0
    k('s_sub_u32 s56, s56, 1')
    k('s_cmp_lg_u32 s56, 0')
    k(f's_cbranch_scc1 {L}')
    k.check_backedge(L)
    st(3)
    ops = pv_ops(3)
    for i, (rd, mf, tag) in enumerate(ops):
        if i + AH < 16:
            ops[i + AH][0]()
        b = use_frag(tag)
        k(mf(b))
    k(f'v_mov_b32 v1, v{LL}')
    k(f'v_permlane32_swap_b32 v1, v{LL}')
    k(f'v_add_f32 v{LL}, v{LL}, v1')
    k(f'v_rcp_f32 v1, v{LL}')
    k(f'v_fma_f32 v3, -v{LL}, v1, 1.0')
    k('v_fmac_f32 v1, v3, v1')
    k('v_and_b32 v3, 31, v2')
    k('v_lshrrev_b32 v4, 5, v2')
    k('v_add_u32 v5, s46, v3')
    k('v_lshlrev_b32 v5, 13, v5')
    k('v_lshl_add_u32 v5, v4, 4, v5')
    k('s_lshl_b32 s51, s43, 8')
    for D in range(4):
        for t2 in range(2):
            o = O + 16 * D + 8 * t2
            t = S + 4 * (2 * D + t2)
            for i in range(8):
                k(f'v_mul_f32 v{o+i}, v{o+i}, v1')
            for i in range(4):
                k(f'v_cvt_pk_bf16_f32 v{t+i}, v{o+2*i}, v{o+2*i+1}')
            k(f'buffer_store_dwordx4 v[{t}:{t+3}], v5, s[28:31], s51 offen offset:{64*D+32*t2}')
    k('s_waitcnt vmcnt(0)')
    if stamp:
        st(4)
        k('s_memrealtime s[82:83]')
        k('s_waitcnt lgkmcnt(0)')
        srd(k, 84, p['ws'], 'q')
        k('s_lshl_b32 s88, s2, 3')
        k('s_add_u32 s88, s88, s45')
        k('s_lshl_b32 s88, s88, 5')
        for i in range(1, 5):
            k(f's_sub_u32 s{70+2*i}, s{70+2*i}, s70')
        k('s_sub_u32 s82, s82, s80')
        for i, sreg in enumerate((72, 74, 76, 78, 82)):
            k(f'v_mov_b32 v1, s{sreg}')
            k(f'v_mov_b32 v3, {4*i}')
            k(f'buffer_store_dword v1, v3, s[84:87], s88 offen')
    k(f'{done}:')
    k('s_endpgm')
    for (sl, rt, par) in slow_blocks:
        sb = S + 32 * par
        pb = P + 16 * par
        k(f'{sl}:')
        k.fence(16)
        k(f'v_max3_f32 v1, v{sb}, v{sb+1}, v{sb+2}')
        for i in range(3, 31, 2):
            k(f'v_max3_f32 v1, v1, v{sb+i}, v{sb+i+1}')
        k(f'v_max_f32 v1, v1, v{sb+31}')
        k('v_mov_b32 v3, v1')
        k('v_permlane32_swap_b32 v3, v1')
        k('v_max_f32 v1, v1, v3')
        k(f'v_max_f32 v1, v1, v{FL}')
        k(f'v_add_f32 v1, {f32bits(32.0)}, v1')
        k(f'v_mov_b32 v{FL}, {f32bits(-32.0)}')
        k(f'v_add_f32 v{MC}, v{MC}, v1')
        k('v_max_f32 v3, 0, v1')
        k('v_exp_f32 v3, -v3')
        k(f'v_mul_f32 v{LL}, v{LL}, v3')
        for i in range(64):
            k(f'v_mul_f32 v{O+i}, v{O+i}, v3')
        k(f'v_mov_b32 v{LS0}, 0')
        for i in range(0, 32, 2):
            k(f'v_sub_f32 v4, v{sb+i}, v1')
            k(f'v_sub_f32 v5, v{sb+i+1}, v1')
            k('v_exp_f32 v4, v4')
            k('v_exp_f32 v5, v5')
            k(f'v_add_f32 v{LS0}, v{LS0}, v4')
            k(f'v_add_f32 v{LS0}, v{LS0}, v5')
            k(f'v_cvt_pk_bf16_f32 v{pb+i//2}, v4, v5')
        k(f's_mov_b32 s63, {f32bits(2.0**80)}')
        k.fence(4)
        k(f's_branch {rt}')
    return k, (256, 512, 147456)
```

```python
from common import *
from attn import Cnt
import math
import numpy as np

LOG2E = 1.4426950408889634
MF = 'v_mfma_f32_16x16x32_bf16'


def k_attn16(stamp=False, BAR=10, prio=False):
    k = Kernel('attn_kernel')
    done = k.label('done')
    k('s_cmp_ge_u32 s2, 256')
    k(f's_cbranch_scc1 {done}')
    p = load_ptrs(k, ['k', 'v', 'wq', 'ws'], 4)
    k('s_and_b32 s40, s2, 7')
    k('s_lshr_b32 s41, s2, 3')
    k('s_lshr_b32 s42, s41, 4')
    k('s_lshl_b32 s43, s40, 1')
    k('s_add_u32 s42, s42, s43')
    k('s_bfe_u32 s43, s41, 0x10003')
    k('s_lshl_b32 s44, s42, 1')
    k('s_add_u32 s43, s43, s44')
    k('s_and_b32 s44, s41, 7')
    k('v_lshrrev_b32 v1, 6, v0')
    k('v_and_b32 v2, 63, v0')
    k('v_readfirstlane_b32 s45, v1')
    k('s_waitcnt lgkmcnt(0)')
    srd(k, 12, p['k'], 'k')
    srd(k, 16, p['ws'], 'vt')
    srd(k, 20, p['ws'], 'wqf')
    srd(k, 24, p['ws'], 'h')
    srd(k, 28, p['ws'], 'o')
    QF = 8
    O = QF + 32
    S = O + 64
    P = S + 64
    FB = P + 32
    NB = 8
    KAD = FB + 32
    NM = KAD + 4
    DK = NM + 8
    DV = DK + 2
    VAD = 247
    LL = 250
    LS = 252
    FL = 254
    TA = (0, 1)
    TB = (6, 7)
    HOFF = QF
    QA = QF + 1
    DW = QF + 9
    k(f's_mov_b32 s62, {f32bits(LOG2E * 128 ** -0.5)}')
    k(f's_mov_b32 s63, {f32bits(-1.0)}')
    k('v_and_b32 v3, 15, v2')
    k('v_lshrrev_b32 v4, 4, v2')
    k('s_lshl_b32 s46, s44, 8')
    k('s_lshl_b32 s47, s45, 5')
    k('s_add_u32 s46, s46, s47')
    k('s_mul_i32 s47, s46, 1152')
    k(f'v_lshlrev_b32 v{HOFF}, 4, v2')
    k(f'v_add_u32 v{HOFF}, s47, v{HOFF}')
    k('v_xor_b32 v6, v3, v4')
    k('v_lshlrev_b32 v7, 8, v3')
    for t in range(4):
        k(f'v_xor_b32 v1, {4*t}, v6')
        k(f'v_lshl_add_u32 v{KAD+t}, v1, 4, v7')
    k(f'v_lshlrev_b32 v{QA}, 4, v2')
    k(f'v_add_u32 v{VAD}, 0x10000, v{QA}')
    k('v_lshrrev_b32 v5, 4, v2')
    k('v_and_b32 v6, 15, v2')
    k('s_lshl_b32 s47, s45, 3')
    for e in range(2):
        k(f'v_add_u32 v7, s47, v5')
        if e:
            k('v_add_u32 v7, 4, v7')
        k('v_and_b32 v1, 15, v7')
        k('v_xor_b32 v1, v1, v6')
        k('v_lshlrev_b32 v0, 8, v7')
        k(f'v_lshl_add_u32 v{DK+e}, v1, 4, v0')
    k('s_lshl_b32 s50, s45, 11')
    k(f'v_lshlrev_b32 v{DV}, 4, v2')
    k(f'v_add_u32 v{DV}, s50, v{DV}')
    k('s_mul_i32 s51, s43, 147456')
    k('s_lshl_b32 s52, s42, 19')
    k('s_mov_b32 s53, s52')
    k('s_add_u32 s57, s52, 0x80000')
    k('s_mov_b32 s59, 0x70000000')

    vm = Cnt(k, 'vmcnt', 63)
    lg = Cnt(k, 'lgkmcnt', 15)

    def st(i):
        if stamp:
            k(f's_memtime s[{70+2*i}:{71+2*i}]')
    st(0)
    if stamp:
        k('s_memrealtime s[80:81]')

    def hreg(c, t, qb):
        return S + (c % 6) * 16 + 8 * t + 4 * qb

    def dma_k_parts(slot, tag):
        def a():
            k('s_cmp_ge_u32 s52, s57')
            k('s_cselect_b32 s58, s59, s52')
            k(f's_add_u32 m0, s50, {slot*16384}')
            k(f'buffer_load_dwordx4 v{DK}, s[12:15], s58 offen lds')
            vm.add(tag, 1)
        def b():
            k(f's_add_u32 m0, s50, {slot*16384+1024}')
            k(f'buffer_load_dwordx4 v{DK+1}, s[12:15], s58 offen lds')
            k('s_add_u32 s52, s52, 16384')
            vm.add(tag, 1)
        return [a, b]

    def dma_v_parts(slot, tag):
        def a():
            k('s_cmp_ge_u32 s53, s57')
            k('s_cselect_b32 s55, s59, s53')
            k(f's_add_u32 m0, s50, {65536+slot*16384}')
            k(f'buffer_load_dwordx4 v{DV}, s[16:19], s55 offen lds')
            vm.add(tag, 1)
        def b():
            k(f's_add_u32 m0, s50, {65536+slot*16384}')
            k(f'buffer_load_dwordx4 v{DV}, s[16:19], s55 offen offset:1024 lds')
            k('s_add_u32 s53, s53, 16384')
            vm.add(tag, 1)
        return [a, b]

    def load_h_parts(c):
        out = []
        for t in range(2):
            for qb in range(2):
                def f(t=t, qb=qb):
                    r = hreg(c, t, qb)
                    k(f's_mov_b32 s54, {2048*c + 18432*qb}')
                    k(f'buffer_load_dwordx4 v[{r}:{r+3}], v{HOFF}, s[24:27], s54 offen offset:{1024*t}')
                    vm.add(('w', c), 1)
                out.append(f)
        return out

    def dma_wq_parts(c):
        def a():
            k(f's_add_u32 m0, s50, {c*16384}')
            k(f'buffer_load_dwordx4 v{DV}, s[20:23], s51 offen lds')
            vm.add(('w', c), 1)
        def b():
            k(f's_add_u32 m0, s50, {c*16384}')
            k(f'buffer_load_dwordx4 v{DV}, s[20:23], s51 offen offset:1024 lds')
            k(f's_add_u32 s51, s51, 16384')
            vm.add(('w', c), 1)
        return [a, b]

    for c in range(3):
        for f in dma_wq_parts(c) + load_h_parts(c):
            f()
    for i in range(64):
        k(f'v_mov_b32 v{O+i}, 0')
    fbn = {'r': 0, 'u': 0}

    def rd_tr(areg, off, tag):
        b = FB + 4 * (fbn['r'] % NB); fbn['r'] += 1
        k(f'ds_read_b64_tr_b16 v[{b}:{b+1}], v{areg} offset:{off}')
        k(f'ds_read_b64_tr_b16 v[{b+2}:{b+3}], v{areg} offset:{off+4096}')
        lg.add(tag, 2)

    def rd_k(areg, off, tag):
        b = FB + 4 * (fbn['r'] % NB); fbn['r'] += 1
        k(f'ds_read_b128 v[{b}:{b+3}], v{areg} offset:{off}')
        lg.add(tag, 1)

    def use_frag(tag, nxt=None):
        if tag in lg.q:
            lg.wait(nxt if (nxt is not None and nxt in lg.q) else tag)
        b = FB + 4 * (fbn['u'] % NB); fbn['u'] += 1
        return b

    def oreg(Db, qb):
        return O + 8 * Db + 4 * qb

    AH = 6
    kvpro = (dma_k_parts(0, ('k', 0)) + dma_k_parts(1, ('g', -3)) + dma_v_parts(0, ('g', -3)) + dma_k_parts(2, ('g', -2))
             + dma_v_parts(1, ('g', -2)) + dma_k_parts(3, ('g', -1)) + dma_v_parts(2, ('g', -1)))
    for c in range(9):
        vm.wait(('w', c))
        k('s_barrier')
        if c in (4, 8):
            k(f'v_add_u32 v{QA}, 0x10000, v{QA}')
        pend = []
        if c + 3 < 9:
            pend = dma_wq_parts(c + 3) + load_h_parts(c + 3)
        elif c >= 7:
            pend = kvpro[:7] if c == 7 else kvpro[7:]
        cb = (c % 4) * 16384
        seq = [(t, Db) for t in range(2) for Db in range(8)]
        for i in range(AH):
            t, Db = seq[i]
            rd_k(QA, cb + (t * 8 + Db) * 1024, (c, t, Db))
        for i, (t, Db) in enumerate(seq):
            if i + AH < 16:
                t2, D2 = seq[i + AH]
                rd_k(QA, cb + (t2 * 8 + D2) * 1024, (c, t2, D2))
            b = use_frag((c, t, Db))
            for qb in range(2):
                hr = hreg(c, t, qb)
                d = oreg(Db, qb)
                k(f'{MF} v[{d}:{d+3}], v[{b}:{b+3}], v[{hr}:{hr+3}], v[{d}:{d+3}]')
            if pend and i % 2 == 1:
                pend.pop(0)()
        assert not pend
    k('v_cmp_gt_u32 vcc, 32, v2')
    for qb in range(2):
        for tq in range(4):
            a, b = oreg(2 * tq, qb), oreg(2 * tq + 1, qb)
            for i in range(4):
                k(f'v_mul_f32 v{a+i}, s62, v{a+i}')
                k(f'v_mul_f32 v{b+i}, s62, v{b+i}')
            q = QF + 16 * qb + 4 * tq
            k(f'v_cvt_pk_bf16_f32 v{q}, v{a}, v{a+1}')
            k(f'v_cvt_pk_bf16_f32 v{q+1}, v{a+2}, v{a+3}')
            k(f'v_cvt_pk_bf16_f32 v{q+2}, v{b}, v{b+1}')
            k(f'v_cvt_pk_bf16_f32 v{q+3}, v{b+2}, v{b+3}')
    for i in range(64):
        k(f'v_mov_b32 v{O+i}, 0')
    for i in range(16):
        k(f'v_mov_b32 v{P+16+i}, 0')
    for qb in range(2):
        for i in range(4):
            k(f'v_mov_b32 v{NM+4*qb+i}, 0')
        k(f'v_mov_b32 v{LL+qb}, 0')
    k(f'v_mov_b32 v{FL}, {f32bits(-3.0e38)}')

    def sreg(j, kb, qb):
        return S + 32 * (j & 1) + 8 * kb + 4 * qb

    def preg(j, u, qb):
        return P + 16 * (j & 1) + 8 * u + 4 * qb

    def qk_ops(j):
        slot = j % 4
        ops = []
        for kb in range(4):
            for t in range(4):
                tag = ('qk', j, kb, t)
                rd = (lambda t=t, kb=kb, tag=tag: rd_k(KAD + t, slot * 16384 + kb * 4096, tag))
                mfs = []
                for qb in range(2):
                    d = sreg(j, kb, qb)
                    c = f'v[{NM+4*qb}:{NM+4*qb+3}]' if t == 0 else f'v[{d}:{d+3}]'
                    q = QF + 16 * qb + 4 * t
                    mfs.append(lambda b, d=d, c=c, q=q: f'{MF} v[{d}:{d+3}], v[{b}:{b+3}], v[{q}:{q+3}], {c}')
                ops.append((rd, mfs, tag))
        return ops

    def pv_ops(j):
        slot = j % 4
        ops = []
        for u in range(2):
            for Db in range(8):
                tag = ('pv', j, u, Db)
                rd = (lambda u=u, Db=Db, tag=tag: rd_k(VAD, slot * 16384 + (u * 8 + Db) * 1024, tag))
                mfs = []
                for qb in range(2):
                    d = oreg(Db, qb)
                    pr = preg(j, u, qb)
                    mfs.append(lambda b, d=d, pr=pr: f'{MF} v[{d}:{d+3}], v[{b}:{b+3}], v[{pr}:{pr+3}], v[{d}:{d+3}]')
                ops.append((rd, mfs, tag))
        return ops

    def sm_pair(a0, a1, pd, tt, qb, first):
        e0, e1 = tt
        s = [f'v_exp_f32 v{e0}, v{a0}',
             f'v_exp_f32 v{e1}, v{a1}',
             f'v_cvt_pk_bf16_f32 v{pd}, v{e0}, v{e1}']
        if first:
            s += [f'v_add_f32 v{LS+qb}, v{e0}, v{e1}']
        else:
            s += [f'v_add_f32 v{LS+qb}, v{LS+qb}, v{e0}',
                  f'v_add_f32 v{LS+qb}, v{LS+qb}, v{e1}']
        return s

    def sm_stream(j):
        out = []
        for kb in range(4):
            for hh in range(2):
                prs = []
                for qb in range(2):
                    a = sreg(j, kb, qb) + 2 * hh
                    pd = preg(j, kb >> 1, qb) + 2 * (kb & 1) + hh
                    prs.append(sm_pair(a, a + 1, pd, TA if qb == 0 else TB, qb, kb == 0 and hh == 0))
                x, y = prs
                merged = x[:2] + y[:2]
                x = x[2:]
                y = y[2:]
                x, y = y, x
                while x or y:
                    if y: merged.append(y.pop(0))
                    if x: merged.append(x.pop(0))
                out += merged
        return out

    slow_blocks = []

    def check(j):
        sl = k.label('slow'); rt = k.label('ret')
        k(f'v_add_f32 v4, v{LS}, v{LS+1}')
        k(f'v_cmp_nge_f32 vcc, s63, v4')
        k(f's_cbranch_vccnz {sl}')
        k(f'{rt}:')
        k(f'v_add_f32 v{LL}, v{LL}, v{LS}')
        k(f'v_add_f32 v{LL+1}, v{LL+1}, v{LS+1}')
        slow_blocks.append((sl, rt, j & 1))

    def iteration(j):
        dm = dma_k_parts((j + 4) % 4, ('g', j)) + dma_v_parts((j + 3) % 4, ('g', j))
        ops = pv_ops(j - 1) + qk_ops(j + 1)
        allops = ops + pv_ops(j)
        valu = sm_stream(j)
        nm = len(ops)
        per = len(valu) / (2 * nm)
        acc = 0.0
        vi = 0
        nrd = AH
        for i, (rd, mfs, tag) in enumerate(ops):
            if i < 8:
                want = 7 + i
            elif i < BAR:
                want = 16
            else:
                want = i + AH + 1
            if i == BAR:
                k('s_waitcnt lgkmcnt(0)')
                lg.q = []
                vm.wait(('g', j - 3))
                k('s_barrier')
            b = None
            for mf in mfs:
                acc += per
                n = int(acc) - vi
                for _ in range(n):
                    k(valu[vi]); vi += 1
                if b is None:
                    while nrd < want:
                        allops[nrd][0](); nrd += 1
                    b = use_frag(tag, allops[i + 1][2])
                k(mf(b))
            if dm and i >= BAR + 4 and (i - BAR) % 3 == 1:
                dm.pop(0)()
        assert not dm and nrd == nm + AH, (nrd, dm)
        while vi < len(valu):
            k(valu[vi]); vi += 1
        check(j)

    st(1)
    vm.wait(('k', 0))
    k('s_barrier')
    ops = qk_ops(0) + pv_ops(-1)
    for i in range(AH):
        ops[i][0]()
    for i, (rd, mfs, tag) in enumerate(ops[:16]):
        ops[i + AH][0]()
        b = use_frag(tag)
        for mf in mfs:
            k(mf(b))
    st(2)
    if prio:
        pl = k.label('prio')
        k('s_cmp_lt_u32 s45, 4')
        k(f's_cbranch_scc1 {pl}')
        k('s_setprio 1')
        k(f'{pl}:')
    L = k.label('loop')
    k('s_mov_b32 s56, 8')
    vq0 = list(vm.q)
    lq0 = list(lg.q)
    f0 = fbn['r'] % NB
    k(f'{L}:')
    for j in range(0, 4):
        iteration(j)
    assert [(a, b - 4) for (a, b) in vm.q] == vq0, (vm.q, vq0)
    assert [(t[0], t[1] - 4) + t[2:] for t in lg.q] == lq0
    assert fbn['r'] % NB == f0
    k('s_sub_u32 s56, s56, 1')
    k('s_cmp_lg_u32 s56, 0')
    k(f's_cbranch_scc1 {L}')
    k.check_backedge(L)
    st(3)
    ops = pv_ops(3)
    for i, (rd, mfs, tag) in enumerate(ops):
        if i + AH < 16:
            ops[i + AH][0]()
        b = use_frag(tag)
        for mf in mfs:
            k(mf(b))
    for qb in range(2):
        l = LL + qb
        k(f'ds_swizzle_b32 v1, v{l} offset:0x401F')
        k('s_waitcnt lgkmcnt(0)')
        k(f'v_add_f32 v{l}, v{l}, v1')
        k(f'v_mov_b32 v1, v{l}')
        k(f'v_permlane32_swap_b32 v1, v{l}')
        k(f'v_add_f32 v{l}, v{l}, v1')
        k(f'v_rcp_f32 v1, v{l}')
        k(f'v_fma_f32 v3, -v{l}, v1, 1.0')
        k(f'v_fma_f32 v{l}, v3, v1, v1')
    k('v_lshlrev_b32 v5, 4, v2')
    k('s_lshl_b32 s51, s46, 13')
    k('s_lshl_b32 s54, s43, 12')
    k('s_add_u32 s51, s51, s54')
    for qb in range(2):
        for t in range(4):
            tr = S + 4 * (4 * qb + t)
            for b in range(2):
                o = oreg(2 * t + b, qb)
                for i in range(4):
                    k(f'v_mul_f32 v{o+i}, v{o+i}, v{LL+qb}')
                k(f'v_cvt_pk_bf16_f32 v{tr+2*b}, v{o}, v{o+1}')
                k(f'v_cvt_pk_bf16_f32 v{tr+2*b+1}, v{o+2}, v{o+3}')
            k(f'buffer_store_dwordx4 v[{tr}:{tr+3}], v5, s[28:31], s51 offen offset:{1024*t} sc0 sc1')
        k('s_add_u32 s51, s51, 131072')
    k('s_waitcnt vmcnt(0)')
    if stamp:
        st(4)
        k('s_memrealtime s[82:83]')
        k('s_waitcnt lgkmcnt(0)')
        srd(k, 84, p['ws'], 'q')
        k('s_lshl_b32 s88, s2, 3')
        k('s_add_u32 s88, s88, s45')
        k('s_lshl_b32 s88, s88, 5')
        for i in range(1, 5):
            k(f's_sub_u32 s{70+2*i}, s{70+2*i}, s70')
        k('s_sub_u32 s82, s82, s80')
        for i, sreg_ in enumerate((72, 74, 76, 78, 82)):
            k(f'v_mov_b32 v1, s{sreg_}')
            k(f'v_mov_b32 v3, {4*i}')
            k(f'buffer_store_dword v1, v3, s[84:87], s88 offen')
    k(f'{done}:')
    k('s_endpgm')
    for (sl, rt, par) in slow_blocks:
        k(f'{sl}:')
        k.fence(16)
        for qb in range(2):
            regs = [sreg(par, kb, qb) + i for kb in range(4) for i in range(4)]
            k(f'v_max3_f32 v1, v{regs[0]}, v{regs[1]}, v{regs[2]}')
            for i in range(3, 15, 2):
                k(f'v_max3_f32 v1, v1, v{regs[i]}, v{regs[i+1]}')
            k(f'v_max_f32 v1, v1, v{regs[15]}')
            k('ds_swizzle_b32 v3, v1 offset:0x401F')
            k('s_waitcnt lgkmcnt(0)')
            k('v_max_f32 v1, v1, v3')
            k('v_mov_b32 v3, v1')
            k('v_permlane32_swap_b32 v3, v1')
            k('v_max_f32 v1, v1, v3')
            k(f'v_max_f32 v1, v1, v{FL}')
            k(f'v_add_f32 v1, {f32bits(32.0)}, v1')
            for i in range(4):
                k(f'v_sub_f32 v{NM+4*qb+i}, v{NM+4*qb+i}, v1')
            for kb in range(4):
                for i in range(4):
                    r_ = sreg(par + 1, kb, qb) + i
                    k(f'v_sub_f32 v{r_}, v{r_}, v1')
            k('v_max_f32 v3, 0, v1')
            k('v_exp_f32 v3, -v3')
            k(f'v_mul_f32 v{LL+qb}, v{LL+qb}, v3')
            for Db in range(8):
                for i in range(4):
                    k(f'v_mul_f32 v{oreg(Db, qb)+i}, v{oreg(Db, qb)+i}, v3')
            k(f'v_mov_b32 v{LS+qb}, 0')
            for kb in range(4):
                for hh in range(2):
                    a = sreg(par, kb, qb) + 2 * hh
                    pd = preg(par, kb >> 1, qb) + 2 * (kb & 1) + hh
                    k(f'v_sub_f32 v4, v{a}, v1')
                    k(f'v_sub_f32 v5, v{a+1}, v1')
                    k('v_exp_f32 v4, v4')
                    k('v_exp_f32 v5, v5')
                    k(f'v_add_f32 v{LS+qb}, v{LS+qb}, v4')
                    k(f'v_add_f32 v{LS+qb}, v{LS+qb}, v5')
                    k(f'v_cvt_pk_bf16_f32 v{pd}, v4, v5')
        k(f'v_mov_b32 v{FL}, {f32bits(-32.0)}')
        k(f's_mov_b32 s63, {f32bits(2.0**80)}')
        k.fence(4)
        k(f's_branch {rt}')
    return k, (256, 512, 147456)
```

```python
from asmlib import *

KA = dict(x=0, k=8, v=16, wq=24, wo=32, bx=40, w_in=48, w_sp=56, b_sp=64, w_out=72, c=80, w_mod=88, out=96, dbg=104, ws=112)
SIZES = dict(x=2048 * 576 * 2, k=16 * 2048 * 128 * 2, v=16 * 2048 * 128 * 2, wq=576 * 4096 * 2, wo=4096 * 576 * 2,
             w_in=576 * 4608 * 2, w_sp=2048 * 2048 * 2, b_sp=2048 * 2, w_out=2304 * 576 * 2, c=576 * 2,
             w_mod=576 * 3456 * 2, out=2048 * 576 * 2)

WS = {}
_off = 0


def _ws(name, nbytes):
    global _off
    WS[name] = (_off, nbytes)
    _off += (nbytes + 65535) // 65536 * 65536


_ws('mod', 3456 * 4)
_ws('h', 2048 * 576 * 2)
_ws('o', 2048 * 4096 * 2)
_ws('p2', 4 * 2048 * 576 * 4)
_ws('x1', 2048 * 576 * 2)
_ws('h2', 2048 * 576 * 2)
_ws('z', 2048 * 4608 * 2)
_ws('z2', 2048 * 2304 * 2)
_ws('y', 2048 * 2304 * 2)
_ws('p5', 4 * 2048 * 576 * 4)
_ws('q', 2048 * 4096 * 2)
_ws('vt', 16 * 2048 * 128 * 2)
_ws('wqf', 576 * 4096 * 2)
_ws('wof', 4096 * 576 * 2)
_ws('winf', 576 * 4608 * 2)
_ws('woutf', 2304 * 576 * 2)
_ws('wspf', 2048 * 2048 * 2)
_ws('stats', 16 * 16 * 128 * 8)


def load_ptrs(k, names, sbase):
    out = {}
    for i, n in enumerate(names):
        k(f's_load_dwordx2 s[{sbase+2*i}:{sbase+2*i+1}], s[0:1], {KA[n]}')
        out[n] = sbase + 2 * i
    return out


def srd(k, sd, sptr, name):
    if name in WS:
        off, size = WS[name]
        k(f's_add_u32 s{sd}, s{sptr}, {hex(off)}')
        k(f's_addc_u32 s{sd+1}, s{sptr+1}, 0')
    else:
        size = SIZES[name]
        k(f's_mov_b32 s{sd}, s{sptr}')
        k(f's_mov_b32 s{sd+1}, s{sptr+1}')
    k(f's_mov_b32 s{sd+2}, {hex(size)}')
    k(f's_mov_b32 s{sd+3}, 0x00020000')


def rbf(k, d, s):
    k(f'v_cvt_pk_bf16_f32 v{d}, v{s}, v{s}')
    k(f'v_and_b32 v{d}, 0xffff0000, v{d}')


def rbf2(k, d0, d1, s0, s1, tmp):
    k(f'v_cvt_pk_bf16_f32 v{tmp}, v{s0}, v{s1}')
    k(f'v_lshlrev_b32 v{d0}, 16, v{tmp}')
    k(f'v_and_b32 v{d1}, 0xffff0000, v{tmp}')


def reduce_add(k, v, tmp, lanes):
    k(f'v_add_f32_dpp v{v}, v{v}, v{v} quad_perm:[1,0,3,2] row_mask:0xf bank_mask:0xf')
    k(f'v_add_f32_dpp v{v}, v{v}, v{v} quad_perm:[2,3,0,1] row_mask:0xf bank_mask:0xf')
    k(f'v_add_f32_dpp v{v}, v{v}, v{v} row_half_mirror row_mask:0xf bank_mask:0xf')
    k(f'v_add_f32_dpp v{v}, v{v}, v{v} row_mirror row_mask:0xf bank_mask:0xf')
    if lanes >= 32:
        k(f'ds_swizzle_b32 v{tmp}, v{v} offset:0x401F')
        k('s_waitcnt lgkmcnt(0)')
        k(f'v_add_f32 v{v}, v{v}, v{tmp}')
    if lanes >= 64:
        k(f'v_mov_b32 v{tmp}, v{v}')
        k(f'v_permlane32_swap_b32 v{tmp}, v{v}')
        k(f'v_add_f32 v{v}, v{v}, v{tmp}')
```

```python
from common import *
from attn import Cnt
import math

LOG2E = 1.4426950408889634
MF = 'v_mfma_f32_16x16x32_bf16'


def k_gemm2(name, a_src, a_lay, lda, b_src, ldb, kmap, nsteps, nsub, ntn, nsplit, epi, stamp=False, R=4):
    assert 16 * ntn * nsplit == 256
    k = Kernel(name)
    MT = 2 * nsub
    NT = 9
    NDMA = 3 * nsub
    STAGE = 18432 * nsub
    done = k.label('done')
    def stp(i):
        if stamp:
            k(f's_memtime s[{70+2*i}:{71+2*i}]')
    stp(0)
    if stamp:
        k('s_memrealtime s[80:81]')
    k('s_cmp_ge_u32 s2, 256')
    k(f's_cbranch_scc1 {done}')
    names = ['ws']
    for s_ in (a_src, b_src):
        if s_ not in WS and s_ not in names:
            names.append(s_)
    if epi == 'gate':
        names.append('b_sp')
    p = load_ptrs(k, names, 4)
    k('s_and_b32 s40, s2, 7')
    k('s_lshr_b32 s41, s2, 3')
    if nsplit == 1:
        k('s_lshr_b32 s42, s40, 1')
        k('s_lshl_b32 s42, s42, 2')
        k('s_and_b32 s43, s41, 3')
        k('s_add_u32 s42, s42, s43')
        k('s_and_b32 s43, s40, 1')
        k('s_lshl_b32 s43, s43, 3')
        k('s_lshr_b32 s44, s41, 2')
        k('s_add_u32 s43, s43, s44')
        k('s_mov_b32 s44, 0')
    else:
        k('s_and_b32 s44, s40, 3')
        k('s_lshr_b32 s42, s40, 2')
        k('s_lshl_b32 s42, s42, 3')
        k('s_and_b32 s43, s41, 7')
        k('s_add_u32 s42, s42, s43')
        k('s_lshr_b32 s43, s41, 3')
    k('v_lshrrev_b32 v1, 6, v0')
    k('v_and_b32 v2, 63, v0')
    k('v_readfirstlane_b32 s45, v1')
    k('s_waitcnt lgkmcnt(0)')
    srd(k, 12, p['ws'] if a_src in WS else p[a_src], a_src)
    srd(k, 16, p['ws'] if b_src in WS else p[b_src], b_src)
    k('s_lshr_b32 s60, s45, 2')
    k('s_and_b32 s61, s45, 3')
    if nsub == 1:
        k('s_lshl_b32 s46, s61, 5')
        k('s_mov_b32 s47, 0')
    else:
        k('s_lshr_b32 s46, s61, 1')
        k('s_lshl_b32 s46, s46, 6')
        k('s_and_b32 s47, s61, 1')
    k('s_lshl_b32 s48, s42, 7')
    k('s_add_u32 s48, s48, s46')
    k(f's_mul_i32 s49, s43, {144*nsub}')
    AOFF = 8
    NA = MT
    DOFF = AOFF + NA
    TR = DOFF + NDMA
    base = (TR + 2 * R + 3) // 4 * 4
    NB = 6 if nsub == 1 else 4
    BF = base
    AF = BF + 4 * NB
    if a_lay == 'frag':
        k('s_lshr_b32 s50, s48, 4')
        k(f's_mul_i32 s50, s50, {lda}')
        k('v_lshlrev_b32 v5, 4, v2')
        k(f'v_add_u32 v{AOFF}, s50, v5')
        for mt in range(1, MT):
            k(f'v_add_u32 v{AOFF+mt}, {lda*mt}, v{AOFF}')
        k(f's_mul_i32 s51, s44, {nsteps*2048}')
        k('s_lshl_b32 s53, s60, 10')
        k('s_add_u32 s51, s51, s53')
        ASTEP = 2048
    else:
        k('v_and_b32 v3, 15, v2')
        k('v_lshrrev_b32 v4, 4, v2')
        k('v_add_u32 v5, s48, v3')
        k(f's_mov_b32 s50, {lda}')
        k('v_mul_lo_u32 v5, v5, s50')
        k(f'v_lshl_add_u32 v{AOFF}, v4, 4, v5')
        for mt in range(1, MT):
            k(f'v_add_u32 v{AOFF+mt}, {16*lda*mt}, v{AOFF}')
        k(f's_mul_i32 s51, s44, {nsteps*128}')
        k('s_lshl_b32 s53, s60, 6')
        k('s_add_u32 s51, s51, s53')
        ASTEP = 128
    k(f's_mul_i32 s52, s44, {nsteps*64*ldb}')
    k('s_lshl_b32 s53, s49, 1')
    k('s_add_u32 s52, s52, s53')
    k('s_mul_i32 s53, s45, 48')
    k('v_add_u32 v5, s53, v2')
    k(f's_mov_b32 s54, {ldb}')
    for j in range(NDMA):
        d = DOFF + j
        jj, sub = j % 3, j // 3
        k(f'v_add_u32 v6, {384*jj}, v5')
        k('v_mul_u32_u24 v3, 3641, v6')
        k('v_lshrrev_b32 v3, 16, v3')
        k('v_mul_u32_u24 v4, 18, v3')
        k('v_sub_u32 v4, v6, v4')
        k('v_lshrrev_b32 v6, 1, v3')
        k('v_xor_b32 v6, v6, v3')
        k('v_and_b32 v6, 4, v6')
        if kmap == 'nat':
            k('v_and_b32 v3, 0x3b, v3')
            k('v_or_b32 v3, v3, v6')
        else:
            k('v_bfe_u32 v7, v3, 3, 2')
            k('v_and_b32 v3, 0x23, v3')
            k('v_lshl_add_u32 v3, v7, 2, v3')
            k('v_lshl_add_u32 v3, v6, 2, v3')
        k('v_mul_lo_u32 v3, v3, s54')
        k(f'v_lshl_add_u32 v{d}, v4, 4, v3')
        if sub:
            k(f'v_add_u32 v{d}, 288, v{d}')
    k('v_lshrrev_b32 v3, 4, v2')
    k('v_and_b32 v4, 1, v3')
    k('v_lshlrev_b32 v4, 2, v4')
    k('v_lshl_add_u32 v4, v3, 3, v4')
    k('v_bfe_u32 v5, v2, 2, 2')
    k('v_add_u32 v4, v4, v5')
    k('v_xor_b32 v5, 4, v4')
    k('v_and_b32 v6, 3, v2')
    k('v_lshlrev_b32 v6, 3, v6')
    k('s_mul_i32 s53, s47, 18432')
    k('s_mul_i32 s55, s60, 9216')
    k('s_add_u32 s53, s53, s55')
    k('v_add_u32 v6, s53, v6')
    k('v_mul_u32_u24 v4, 288, v4')
    k('v_add_u32 v4, v4, v6')
    k('v_mul_u32_u24 v5, 288, v5')
    k('v_add_u32 v5, v5, v6')
    for st in range(R):
        k(f'v_add_u32 v{TR+2*st}, {st*STAGE}, v4')
        k(f'v_add_u32 v{TR+2*st+1}, {st*STAGE}, v5')
    k('s_mul_i32 s55, s45, 768')
    k('s_mov_b32 s62, -1')
    k('s_mov_b32 s63, 0xffff')
    vm = Cnt(k, 'vmcnt', 63)
    lg = Cnt(k, 'lgkmcnt', 15)

    def group_parts(st, tag):
        out = []
        for j in range(NDMA):
            def f(j=j):
                k(f's_add_u32 m0, s55, {st*STAGE + (j // 3) * 18432 + 6144*(j % 3)}')
                k('s_mov_b64 exec, s[62:63]')
                k(f'buffer_load_dwordx4 v{DOFF+j}, s[16:19], s52 offen lds')
                k('s_mov_b64 exec, -1')
                if j == NDMA - 1:
                    k(f's_add_u32 s52, s52, {64*ldb}')
                vm.add(tag, 1)
            out.append(f)
        for mt in range(MT):
            def f(mt=mt):
                r = AF + (st * MT + mt) * 4
                k(f'buffer_load_dwordx4 v[{r}:{r+3}], v{AOFF+mt}, s[12:15], s51 offen')
                if mt == MT - 1:
                    k(f's_add_u32 s51, s51, {ASTEP}')
                vm.add(tag, 1)
            out.append(f)
        return out

    for st_ in range(min(R - 1, nsteps)):
        for f in group_parts(st_, ('g', st_)):
            f()
    for i in range(MT * NT * 4):
        k(f'v_accvgpr_write_b32 a{i}, 0')
    state = {'r': 0, 'u': 0}

    def read_frag(st, nt, tag):
        b = BF + 4 * (state['r'] % NB)
        state['r'] += 1
        k(f'ds_read_b64_tr_b16 v[{b}:{b+1}], v{TR+2*st} offset:{nt*32}')
        k(f'ds_read_b64_tr_b16 v[{b+2}:{b+3}], v{TR+2*st+1} offset:{nt*32}')
        lg.add(tag, 2)

    AHEAD = NB - 1
    BARF = 3 if nsub == 1 else 4

    def step(s, issue, last):
        st = s % R
        pend = []
        for f in range(9):
            if f == BARF and not last:
                vm.wait(('g', s + 1))
                k('s_barrier')
                if issue:
                    pend = group_parts((st + R - 1) % R, ('g', s + R - 1))
            nf = f + AHEAD
            if nf < 9:
                read_frag(st, nf, ('f', s, nf))
            elif not last:
                read_frag((st + 1) % R, nf - 9, ('f', s + 1, nf - 9))
            lg.wait(('f', s, f))
            b = BF + 4 * (state['u'] % NB)
            state['u'] += 1
            for mt in range(MT):
                a = AF + (st * MT + mt) * 4
                d = (mt * NT + f) * 4
                k(f'{MF} a[{d}:{d+3}], v[{b}:{b+3}], v[{a}:{a+3}], a[{d}:{d+3}]')
                if pend and (mt % 2 == 1):
                    pend.pop(0)()
        while pend:
            pend.pop(0)()

    vm.wait(('g', 0))
    k('s_barrier')
    stp(1)
    for f in range(AHEAD):
        read_frag(0, f, ('f', 0, f))
    if nsteps % R == 0 and nsteps >= 2 * R:
        nloop = nsteps // R - 1
        k(f's_mov_b32 s56, {nloop}')
        L = k.label('loop')
        vq0 = list(vm.q); lq0 = list(lg.q)
        k(f'{L}:')
        for u in range(R):
            step(u, True, False)
        assert [(a, b - R) for (a, b) in vm.q] == vq0
        assert [(a, b - R, c) for (a, b, c) in lg.q] == lq0
        k('s_sub_u32 s56, s56, 1')
        k('s_cmp_lg_u32 s56, 0')
        k(f's_cbranch_scc1 {L}')
        k.check_backedge(L)
        first = nsteps - R
        sh = first - R
        vm.q = [(a, b + sh) for (a, b) in vm.q]
        lg.q = [(a, b + sh, c) for (a, b, c) in lg.q]
    else:
        first = 0
    for s in range(first, nsteps):
        step(s, s + R - 1 <= nsteps - 1, s == nsteps - 1)

    H = MT // 2
    stp(2)
    k('s_barrier')
    k(f's_mul_i32 s53, s45, {H*9*1024}')
    k('v_lshlrev_b32 v3, 4, v2')
    k('v_add_u32 v3, s53, v3')
    k('s_xor_b32 s53, s45, 4')
    k(f's_mul_i32 s53, s53, {H*9*1024}')
    k('v_lshlrev_b32 v4, 4, v2')
    k('v_add_u32 v4, s53, v4')
    T = BF
    NTMP = (AF + R * MT * 4 - BF) // 4
    lab1 = k.label('hi'); lab2 = k.label('join')
    k('s_cmp_eq_u32 s60, 1')
    k(f's_cbranch_scc1 {lab1}')
    for grp in range(2):
        k.fence(8)
        send0 = H if grp == 0 else 0
        n = 0
        for mt in range(H):
            for nt in range(NT):
                d = ((send0 + mt) * NT + nt) * 4
                t = T + 4 * (n % NTMP); n += 1
                for r in range(4):
                    k(f'v_accvgpr_read_b32 v{t+r}, a{d+r}')
                k(f'ds_write_b128 v3, v[{t}:{t+3}] offset:{(mt*NT+nt)*1024}')
        if grp == 1:
            for i in range(H * NT * 4):
                k(f'v_accvgpr_read_b32 v1, a{H*NT*4+i}')
                k(f'v_accvgpr_write_b32 a{i}, v1')
            k(f's_add_u32 s48, s48, {16*H}')
        else:
            k(f's_branch {lab2}')
            k(f'{lab1}:')
    k(f'{lab2}:')
    k('s_waitcnt lgkmcnt(0)')
    k('s_barrier')
    stp(3)
    k('v_and_b32 v3, 15, v2')
    k('v_lshrrev_b32 v5, 4, v2')
    k('v_add_u32 v3, s48, v3')
    k('s_mul_i32 s53, s47, 144')
    k('s_add_u32 s53, s53, s49')
    k('v_lshl_add_u32 v5, v5, 2, s53')

    def fetch(mt, nt, t):
        d = (mt * NT + nt) * 4
        k(f'ds_read_b128 v[{t+4}:{t+7}], v4 offset:{(mt*NT+nt)*1024}')
        for r in range(4):
            k(f'v_accvgpr_read_b32 v{t+r}, a{d+r}')
        k('s_waitcnt lgkmcnt(0)')
        for r in range(4):
            k(f'v_add_f32 v{t+r}, v{t+r}, v{t+4+r}')

    if epi in ('part2', 'part5'):
        srd(k, 20, p['ws'], 'p2' if epi == 'part2' else 'p5')
        k('v_mul_u32_u24 v6, 2304, v3')
        k('v_lshl_add_u32 v6, v5, 2, v6')
        k(f's_mul_i32 s57, s44, {2048*2304}')
        n = 0
        for mt in range(H):
            for nt in range(NT):
                t = T + 8 * (n % 4); n += 1
                fetch(mt, nt, t)
                k(f'buffer_store_dwordx4 v[{t}:{t+3}], v6, s[20:23], s57 offen offset:{64*nt}')
            k(f's_add_u32 s57, s57, {16*2304}')
    elif epi == 'gelu':
        srd(k, 20, p['ws'], 'z')
        k('v_mul_u32_u24 v6, 9216, v3')
        k('v_lshl_add_u32 v6, v5, 1, v6')
        k('s_mov_b32 s57, 0')
        c0 = -2.0 * LOG2E * math.sqrt(2.0 / math.pi)
        k(f's_mov_b32 s58, {f32bits(c0)}')
        k(f's_mov_b32 s59, {f32bits(c0*0.044715)}')
        k(f'v_mov_b32 v7, s58')
        n = 0
        for mt in range(H):
            for nt in range(NT):
                t = T + 12 * (n % 4); n += 1
                fetch(mt, nt, t)
                rbf2(k, t, t + 1, t, t + 1, t + 4)
                rbf2(k, t + 2, t + 3, t + 2, t + 3, t + 5)
                for r in range(4):
                    k(f'v_mul_f32 v{t+4+r}, v{t+r}, v{t+r}')
                for r in range(4):
                    k(f'v_fma_f32 v{t+4+r}, v{t+4+r}, s59, v7')
                for r in range(4):
                    k(f'v_mul_f32 v{t+4+r}, v{t+4+r}, v{t+r}')
                for r in range(4):
                    k(f'v_exp_f32 v{t+4+r}, v{t+4+r}')
                for r in range(4):
                    k(f'v_add_f32 v{t+4+r}, 1.0, v{t+4+r}')
                for r in range(4):
                    k(f'v_rcp_f32 v{t+4+r}, v{t+4+r}')
                for r in range(4):
                    k(f'v_mul_f32 v{t+r}, v{t+r}, v{t+4+r}')
                k(f'v_cvt_pk_bf16_f32 v{t+8}, v{t}, v{t+1}')
                k(f'v_cvt_pk_bf16_f32 v{t+9}, v{t+2}, v{t+3}')
                k(f'buffer_store_dwordx2 v[{t+8}:{t+9}], v6, s[20:23], s57 offen offset:{32*nt}')
            k(f's_add_u32 s57, s57, {16*9216}')
    elif epi == 'gate':
        assert H == 1
        srd(k, 20, p['ws'], 'y')
        srd(k, 24, p['ws'], 'z')
        srd(k, 28, p['b_sp'], 'b_sp')
        k('v_mul_u32_u24 v6, 9216, v3')
        k('v_lshl_add_u32 v6, v5, 1, v6')
        k('v_lshlrev_b32 v7, 1, v3')
        Z = AF
        BS = TR
        k(f'buffer_load_ushort v{BS}, v7, s[28:31], 0 offen')
        for nt in range(NT):
            z = Z + 2 * nt
            k(f'buffer_load_dwordx2 v[{z}:{z+1}], v6, s[24:27], 0 offen offset:{32*nt}')
        k('s_lshr_b32 s57, s48, 4')
        k(f's_mul_i32 s57, s57, {72*1024}')
        k('s_lshr_b32 s58, s53, 4')
        k('v_lshlrev_b32 v6, 4, v2')
        k('s_waitcnt vmcnt(0)')
        k(f'v_lshlrev_b32 v{BS}, 16, v{BS}')
        n = 0
        for nt in range(NT):
            z = Z + 2 * nt
            t = T + 12 * (n % 2); n += 1
            fetch(0, nt, t)
            rbf2(k, t, t + 1, t, t + 1, t + 4)
            rbf2(k, t + 2, t + 3, t + 2, t + 3, t + 5)
            for r in range(4):
                k(f'v_add_f32 v{t+r}, v{t+r}, v{BS}')
            rbf2(k, t, t + 1, t, t + 1, t + 4)
            rbf2(k, t + 2, t + 3, t + 2, t + 3, t + 5)
            k(f'v_lshlrev_b32 v{t+4}, 16, v{z}')
            k(f'v_and_b32 v{t+5}, 0xffff0000, v{z}')
            k(f'v_lshlrev_b32 v{t+6}, 16, v{z+1}')
            k(f'v_and_b32 v{t+7}, 0xffff0000, v{z+1}')
            for r in range(4):
                k(f'v_mul_f32 v{t+r}, v{t+r}, v{t+4+r}')
            k(f'v_cvt_pk_bf16_f32 v{t+8}, v{t}, v{t+1}')
            k(f'v_cvt_pk_bf16_f32 v{t+9}, v{t+2}, v{t+3}')
            k(f's_add_u32 s59, s58, {nt}')
            k('s_lshr_b32 s64, s59, 1')
            k('s_lshl_b32 s64, s64, 10')
            k('s_and_b32 s59, s59, 1')
            k('s_lshl_b32 s59, s59, 3')
            k('s_add_u32 s59, s59, s64')
            k('s_add_u32 s59, s59, s57')
            k(f'buffer_store_dwordx2 v[{t+8}:{t+9}], v6, s[20:23], s59 offen')
    if stamp:
        k('s_waitcnt vmcnt(0)')
        stp(4)
        k('s_memrealtime s[82:83]')
        k('s_waitcnt lgkmcnt(0)')
        srd(k, 84, p['ws'], 'q')
        k('s_lshl_b32 s88, s2, 3')
        k('s_add_u32 s88, s88, s45')
        k('s_lshl_b32 s88, s88, 5')
        for i in range(1, 5):
            k(f's_sub_u32 s{70+2*i}, s{70+2*i}, s70')
        k('s_sub_u32 s82, s82, s80')
        for i, sreg_ in enumerate((72, 74, 76, 78, 82)):
            k(f'v_mov_b32 v1, s{sreg_}')
            k(f'v_mov_b32 v3, {4*i}')
            k(f'buffer_store_dword v1, v3, s[84:87], s88 offen')
    k(f'{done}:')
    k('s_endpgm')
    k.nacc = MT * NT * 4
    return k, (256, 512, R * STAGE)
```

```python
from common import *
from attn import Cnt
import math

LOG2E = 1.4426950408889634
MF = 'v_mfma_f32_16x16x32_bf16'
SC = 'sc0 sc1'


def k_gemm3(name, a_src, lda, b_src, ntg, nsteps, nsub, ntn, nsplit, epi, stamp=False, R=4):
    assert 16 * ntn * nsplit == 256
    k = Kernel(name)
    MT = 2 * nsub
    NT = 9
    NDMA = 3 * nsub
    STAGE = 18432 * nsub
    done = k.label('done')

    def stp(i):
        if stamp:
            k(f's_memtime s[{70+2*i}:{71+2*i}]')
    stp(0)
    if stamp:
        k('s_memrealtime s[80:81]')
    k('s_cmp_ge_u32 s2, 256')
    k(f's_cbranch_scc1 {done}')
    names = ['ws'] + (['b_sp'] if epi == 'gate' else [])
    p = load_ptrs(k, names, 4)
    k('s_and_b32 s40, s2, 7')
    k('s_lshr_b32 s41, s2, 3')
    if nsplit == 1:
        k('s_lshr_b32 s42, s40, 1')
        k('s_lshl_b32 s42, s42, 2')
        k('s_and_b32 s43, s41, 3')
        k('s_add_u32 s42, s42, s43')
        k('s_and_b32 s43, s40, 1')
        k('s_lshl_b32 s43, s43, 3')
        k('s_lshr_b32 s44, s41, 2')
        k('s_add_u32 s43, s43, s44')
        k('s_mov_b32 s44, 0')
    else:
        k('s_and_b32 s44, s40, 3')
        k('s_lshr_b32 s42, s40, 2')
        k('s_lshl_b32 s42, s42, 3')
        k('s_and_b32 s43, s41, 7')
        k('s_add_u32 s42, s42, s43')
        k('s_lshr_b32 s43, s41, 3')
    k('v_lshrrev_b32 v1, 6, v0')
    k('v_and_b32 v2, 63, v0')
    k('v_readfirstlane_b32 s45, v1')
    k('v_lshlrev_b32 v8, 4, v2')
    k('s_lshr_b32 s60, s45, 2')
    k('s_and_b32 s61, s45, 3')
    if nsub == 1:
        k('s_lshl_b32 s46, s61, 5')
        k('s_mov_b32 s47, 0')
    else:
        k('s_lshr_b32 s46, s61, 1')
        k('s_lshl_b32 s46, s46, 6')
        k('s_and_b32 s47, s61, 1')
    k('s_lshl_b32 s48, s42, 7')
    k('s_add_u32 s48, s48, s46')
    k(f's_mul_i32 s49, s43, {144*nsub}')
    LN = 8
    AOFF = 9
    TRA = AOFF + MT
    NW = (R * STAGE + 65535) // 65536
    base = (TRA + NW + 3) // 4 * 4
    NB = 6 if nsub == 1 else 4
    BF = base
    AF = BF + 4 * NB
    k('s_lshr_b32 s50, s48, 4')
    k(f's_mul_i32 s50, s50, {lda}')
    k(f'v_add_u32 v{AOFF}, s50, v{LN}')
    for mt in range(1, MT):
        k(f'v_add_u32 v{AOFF+mt}, {lda*mt}, v{AOFF}')
    k(f's_mul_i32 s51, s44, {nsteps*2048}')
    k('s_lshl_b32 s53, s60, 10')
    k('s_add_u32 s51, s51, s53')
    k(f's_mul_i32 s52, s44, {2*nsteps}')
    k('s_add_u32 s52, s52, s60')
    k(f's_mul_i32 s52, s52, {ntg*1024}')
    k(f's_mul_i32 s53, s43, {9*nsub*1024}')
    k('s_add_u32 s52, s52, s53')
    k(f's_mul_i32 s53, s61, {NDMA*768}')
    k('s_add_u32 s52, s52, s53')
    k(f's_mul_i32 s55, s60, {9216*nsub}')
    k('s_add_u32 s55, s55, s53')
    k(f's_mul_i32 s53, s60, {9216*nsub}')
    k('s_mul_i32 s54, s47, 9216')
    k('s_add_u32 s53, s53, s54')
    k(f'v_add_u32 v{TRA}, s53, v{LN}')
    for w in range(1, NW):
        k(f'v_add_u32 v{TRA+w}, {65536*w}, v{TRA}')
    k('s_mov_b32 s62, -1')
    k('s_mov_b32 s63, 0xffff')
    k('s_waitcnt lgkmcnt(0)')
    srd(k, 12, p['ws'], a_src)
    srd(k, 16, p['ws'], b_src)
    vm = Cnt(k, 'vmcnt', 63)
    lg = Cnt(k, 'lgkmcnt', 15)

    def group_parts(st, tag):
        out = []
        for mt in range(MT):
            def f(mt=mt):
                r = AF + (st * MT + mt) * 4
                k(f'buffer_load_dwordx4 v[{r}:{r+3}], v{AOFF+mt}, s[12:15], s51 offen')
                if mt == MT - 1:
                    k('s_add_u32 s51, s51, 2048')
                vm.add(tag, 1)
            out.append(f)
        for j in range(NDMA):
            def f(j=j):
                if j % 3 == 0:
                    k(f's_add_u32 m0, s55, {st*STAGE + 2304*(j//3)}')
                    if j:
                        k('s_add_u32 s52, s52, 2304')
                k('s_mov_b64 exec, s[62:63]')
                k(f'buffer_load_dwordx4 v{LN}, s[16:19], s52 offen offset:{768*(j%3)} lds')
                k('s_mov_b64 exec, -1')
                if j == NDMA - 1:
                    k(f's_add_u32 s52, s52, {2*ntg*1024 - 2304*(nsub-1)}')
                vm.add(tag, 1)
            out.append(f)
        return out

    for st_ in range(min(R - 1, nsteps)):
        for f in group_parts(st_, ('g', st_)):
            f()
    for i in range(MT * NT * 4):
        k(f'v_accvgpr_write_b32 a{i}, 0')
    state = {'r': 0, 'u': 0}

    def read_frag(st, nt, tag):
        b = BF + 4 * (state['r'] % NB)
        state['r'] += 1
        off = st * STAGE + nt * 1024
        k(f'ds_read_b128 v[{b}:{b+3}], v{TRA + off // 65536} offset:{off % 65536}')
        lg.add(tag, 1)

    AHEAD = NB - 1
    BARF = 9 - AHEAD - 1

    def step(s, issue, last):
        st = s % R
        pend = []
        for f in range(9):
            if f == BARF and not last:
                vm.wait(('g', s + 1))
                k('s_barrier')
                if issue:
                    pend = group_parts((st + R - 1) % R, ('g', s + R - 1))
            nf = f + AHEAD
            if nf < 9:
                read_frag(st, nf, ('f', s, nf))
            elif not last:
                read_frag((st + 1) % R, nf - 9, ('f', s + 1, nf - 9))
            lg.wait(('f', s, f))
            b = BF + 4 * (state['u'] % NB)
            state['u'] += 1
            for mt in range(MT):
                a = AF + (st * MT + mt) * 4
                d = (mt * NT + f) * 4
                k(f'{MF} a[{d}:{d+3}], v[{b}:{b+3}], v[{a}:{a+3}], a[{d}:{d+3}]')
                if pend and (mt % 2 == 1):
                    pend.pop(0)()
        while pend:
            pend.pop(0)()

    vm.wait(('g', 0))
    k('s_barrier')
    stp(1)
    for f in range(AHEAD):
        read_frag(0, f, ('f', 0, f))
    if nsteps % R == 0 and nsteps >= 2 * R:
        nloop = nsteps // R - 1
        k(f's_mov_b32 s56, {nloop}')
        L = k.label('loop')
        vq0 = list(vm.q); lq0 = list(lg.q)
        k(f'{L}:')
        for u in range(R):
            step(u, True, False)
        assert [(a, b - R) for (a, b) in vm.q] == vq0
        assert [(a, b - R, c) for (a, b, c) in lg.q] == lq0
        k('s_sub_u32 s56, s56, 1')
        k('s_cmp_lg_u32 s56, 0')
        k(f's_cbranch_scc1 {L}')
        k.check_backedge(L)
        first = nsteps - R
        sh = first - R
        vm.q = [(a, b + sh) for (a, b) in vm.q]
        lg.q = [(a, b + sh, c) for (a, b, c) in lg.q]
    else:
        first = 0
    H = MT // 2
    k(f's_mul_i32 s64, s60, {16*H}')
    k('s_add_u32 s48, s48, s64')
    k('v_and_b32 v3, 15, v2')
    k('v_lshrrev_b32 v5, 4, v2')
    k('v_add_u32 v3, s48, v3')
    k('s_mul_i32 s53, s47, 144')
    k('s_add_u32 s53, s53, s49')
    k('v_lshl_add_u32 v5, v5, 2, s53')
    EX = AF + R * MT * 4
    if epi == 'gate':
        srd(k, 20, p['ws'], 'y')
        srd(k, 24, p['ws'], 'z')
        srd(k, 28, p['b_sp'], 'b_sp')
        k('s_lshr_b32 s65, s48, 5')
        k(f's_mul_i32 s65, s65, {288*1024}')
        k('s_lshl_b32 s64, s53, 6')
        k('s_add_u32 s65, s65, s64')
        k('s_lshr_b32 s64, s48, 1')
        k('s_and_b32 s64, s64, 8')
        k('s_add_u32 s65, s65, s64')
        k('s_add_u32 s66, s65, 4096')
        k('s_add_u32 s67, s65, 8192')
        k('v_lshlrev_b32 v7, 1, v3')
    for s in range(first, nsteps):
        step(s, s + R - 1 <= nsteps - 1, s == nsteps - 1)
        if epi == 'gate' and s == nsteps - 2:
            k(f'buffer_load_ushort v{EX+18}, v7, s[28:31], 0 offen')
            for nt in range(NT):
                k(f'buffer_load_dwordx2 v[{EX+2*nt}:{EX+2*nt+1}], v{LN}, s[24:27], s{65+nt//4} offen offset:{1024*(nt%4)}')

    stp(2)
    k('s_barrier')
    k(f's_mul_i32 s64, s45, {H*9*1024}')
    k(f'v_add_u32 v1, s64, v{LN}')
    k('s_xor_b32 s64, s45, 4')
    k(f's_mul_i32 s64, s64, {H*9*1024}')
    k(f'v_add_u32 v4, s64, v{LN}')
    T = BF
    NTMP = (AF + R * MT * 4 - BF) // 4
    lab1 = k.label('hi'); lab2 = k.label('end')
    k('s_cmp_eq_u32 s60, 1')
    k(f's_cbranch_scc1 {lab1}')
    for grp in range(2):
        k.fence(8)
        send0 = H if grp == 0 else 0
        keep0 = 0 if grp == 0 else H
        n = 0
        for mt in range(H):
            for nt in range(NT):
                d = ((send0 + mt) * NT + nt) * 4
                t = T + 4 * (n % NTMP); n += 1
                for r in range(4):
                    k(f'v_accvgpr_read_b32 v{t+r}, a{d+r}')
                k(f'ds_write_b128 v1, v[{t}:{t+3}] offset:{(mt*NT+nt)*1024}')
        k('s_waitcnt lgkmcnt(0)')
        k('s_barrier')
        if grp == 0:
            stp(3)
        PR = T
        W = T + 36
        if epi in ('part2', 'part5'):
            srd(k, 20, p['ws'], 'p2' if epi == 'part2' else 'p5')
            k('v_mul_u32_u24 v6, 2304, v3')
            k('v_lshl_add_u32 v6, v5, 2, v6')
            k(f's_mul_i32 s57, s44, {2048*2304}')
        elif epi == 'gelu':
            srd(k, 20, p['ws'], 'z')
            k('v_mul_u32_u24 v6, 9216, v3')
            k('v_lshl_add_u32 v6, v5, 1, v6')
            k('s_mov_b32 s57, 0')
            c0 = -2.0 * LOG2E * math.sqrt(2.0 / math.pi)
            k(f's_mov_b32 s58, {f32bits(c0)}')
            k(f's_mov_b32 s59, {f32bits(c0*0.044715)}')
            k('v_mov_b32 v7, s58')
        else:
            k('s_lshr_b32 s57, s48, 4')
            k(f's_mul_i32 s57, s57, {72*1024}')
            k('s_lshr_b32 s58, s53, 4')
            k('s_waitcnt vmcnt(0)')
            k(f'v_lshlrev_b32 v{EX+18}, 16, v{EX+18}')
        if epi == 'gelu':
            k('s_lshr_b32 s57, s48, 5')
            k(f's_mul_i32 s57, s57, {288*1024}')
            k('s_lshl_b32 s64, s53, 6')
            k('s_add_u32 s57, s57, s64')
            for half in range(2):
                nts = list(range(0, 5)) if half == 0 else list(range(5, 9))
                for i, nt in enumerate(nts):
                    for mt in range(2):
                        r_ = PR + 8 * i + 4 * mt
                        k(f'ds_read_b128 v[{r_}:{r_+3}], v4 offset:{(mt*NT+nt)*1024}')
                for i, nt in enumerate(nts):
                    w = T + 40 + 8 * (i % 2)
                    t = PR + 8 * i
                    for mt in range(2):
                        d = ((keep0 + mt) * NT + nt) * 4
                        for r in range(4):
                            k(f'v_accvgpr_read_b32 v{w+4*mt+r}, a{d+r}')
                    k(f's_waitcnt lgkmcnt({2*(len(nts)-1-i)})')
                    for r in range(8):
                        k(f'v_add_f32 v{t+r}, v{t+r}, v{w+r}')
                    for r in range(0, 8, 2):
                        rbf2(k, t + r, t + r + 1, t + r, t + r + 1, w + r)
                    for r in range(8):
                        k(f'v_mul_f32 v{w+r}, v{t+r}, v{t+r}')
                    for r in range(8):
                        k(f'v_fma_f32 v{w+r}, v{w+r}, s59, v7')
                    for r in range(8):
                        k(f'v_mul_f32 v{w+r}, v{w+r}, v{t+r}')
                    for r in range(8):
                        k(f'v_exp_f32 v{w+r}, v{w+r}')
                    for r in range(8):
                        k(f'v_add_f32 v{w+r}, 1.0, v{w+r}')
                    for r in range(8):
                        k(f'v_rcp_f32 v{w+r}, v{w+r}')
                    for r in range(8):
                        k(f'v_mul_f32 v{t+r}, v{t+r}, v{w+r}')
                    for r in range(4):
                        k(f'v_cvt_pk_bf16_f32 v{t+r}, v{t+2*r}, v{t+2*r+1}')
                    if nt == 4:
                        k('s_add_u32 s57, s57, 4096')
                    if nt == 8:
                        k('s_add_u32 s57, s57, 4096')
                    k(f'buffer_store_dwordx4 v[{t}:{t+3}], v{LN}, s[20:23], s57 offen offset:{1024*(nt%4)} {SC}')
        for mt in range(H if epi != 'gelu' else 0):
            for nt in range(NT):
                k(f'ds_read_b128 v[{PR+4*nt}:{PR+4*nt+3}], v4 offset:{(mt*NT+nt)*1024}')
            for nt in range(NT):
                d = ((keep0 + mt) * NT + nt) * 4
                t = PR + 4 * nt
                w = W + 8 * (nt % 2)
                for r in range(4):
                    k(f'v_accvgpr_read_b32 v{w+r}, a{d+r}')
                k(f's_waitcnt lgkmcnt({8-nt})')
                for r in range(4):
                    k(f'v_add_f32 v{t+r}, v{t+r}, v{w+r}')
                if epi in ('part2', 'part5'):
                    k(f'buffer_store_dwordx4 v[{t}:{t+3}], v6, s[20:23], s57 offen offset:{64*nt} {SC}')
                elif epi == 'gelu':
                    rbf2(k, t, t + 1, t, t + 1, w)
                    rbf2(k, t + 2, t + 3, t + 2, t + 3, w + 1)
                    for r in range(4):
                        k(f'v_mul_f32 v{w+r}, v{t+r}, v{t+r}')
                    for r in range(4):
                        k(f'v_fma_f32 v{w+r}, v{w+r}, s59, v7')
                    for r in range(4):
                        k(f'v_mul_f32 v{w+r}, v{w+r}, v{t+r}')
                    for r in range(4):
                        k(f'v_exp_f32 v{w+r}, v{w+r}')
                    for r in range(4):
                        k(f'v_add_f32 v{w+r}, 1.0, v{w+r}')
                    for r in range(4):
                        k(f'v_rcp_f32 v{w+r}, v{w+r}')
                    for r in range(4):
                        k(f'v_mul_f32 v{t+r}, v{t+r}, v{w+r}')
                    k(f'v_cvt_pk_bf16_f32 v{t}, v{t}, v{t+1}')
                    k(f'v_cvt_pk_bf16_f32 v{t+1}, v{t+2}, v{t+3}')
                    k(f'buffer_store_dwordx2 v[{t}:{t+1}], v6, s[20:23], s57 offen offset:{32*nt} {SC}')
                else:
                    z = EX + 2 * nt
                    rbf2(k, t, t + 1, t, t + 1, w)
                    rbf2(k, t + 2, t + 3, t + 2, t + 3, w + 1)
                    for r in range(4):
                        k(f'v_add_f32 v{t+r}, v{t+r}, v{EX+18}')
                    rbf2(k, t, t + 1, t, t + 1, w)
                    rbf2(k, t + 2, t + 3, t + 2, t + 3, w + 1)
                    k(f'v_lshlrev_b32 v{w}, 16, v{z}')
                    k(f'v_and_b32 v{w+1}, 0xffff0000, v{z}')
                    k(f'v_lshlrev_b32 v{w+2}, 16, v{z+1}')
                    k(f'v_and_b32 v{w+3}, 0xffff0000, v{z+1}')
                    for r in range(4):
                        k(f'v_mul_f32 v{t+r}, v{t+r}, v{w+r}')
                    k(f'v_cvt_pk_bf16_f32 v{t}, v{t}, v{t+1}')
                    k(f'v_cvt_pk_bf16_f32 v{t+1}, v{t+2}, v{t+3}')
                    k(f's_add_u32 s59, s58, {nt}')
                    k('s_lshr_b32 s64, s59, 1')
                    k('s_lshl_b32 s64, s64, 10')
                    k('s_and_b32 s59, s59, 1')
                    k('s_lshl_b32 s59, s59, 3')
                    k('s_add_u32 s59, s59, s64')
                    k('s_add_u32 s59, s59, s57')
                    k(f'buffer_store_dwordx2 v[{t}:{t+1}], v{LN}, s[20:23], s59 offen {SC}')
            if mt < H - 1:
                k(f's_add_u32 s57, s57, {16*(2304 if epi.startswith("part") else 9216)}')
        if grp == 0:
            k(f's_branch {lab2}')
            k(f'{lab1}:')
    k(f'{lab2}:')
    if stamp:
        k('s_waitcnt vmcnt(0)')
        stp(4)
        k('s_memrealtime s[82:83]')
        k('s_waitcnt lgkmcnt(0)')
        srd(k, 84, p['ws'], 'q')
        k('s_lshl_b32 s88, s2, 3')
        k('s_add_u32 s88, s88, s45')
        k('s_lshl_b32 s88, s88, 5')
        for i in range(1, 5):
            k(f's_sub_u32 s{70+2*i}, s{70+2*i}, s70')
        k('s_sub_u32 s82, s82, s80')
        for i, sreg_ in enumerate((72, 74, 76, 78, 82)):
            k(f'v_mov_b32 v1, s{sreg_}')
            k(f'v_mov_b32 v3, {4*i}')
            k(f'buffer_store_dword v1, v3, s[84:87], s88 offen')
    k(f'{done}:')
    k('s_endpgm')
    k.nacc = MT * NT * 4
    return k, (256, 512, max(R * STAGE, 8 * H * 9216))
```

```python
from common import *


def emit_prep_b(k, src, ldb, K, N, W, kmap, dst, widx_sreg, lds_base_sreg, qperm=False):
    NBK = N // W
    CH = W // 8
    NT = W // 16
    if NBK == 1:
        k(f's_mov_b32 s21, s{widx_sreg}')
    else:
        magic = (1 << 32) // NBK + 1
        k(f's_mov_b32 s20, {magic}')
        k(f's_mul_hi_u32 s21, s{widx_sreg}, s20')
    k(f's_mul_i32 s22, s21, {NBK}')
    k(f's_sub_u32 s22, s{widx_sreg}, s22')
    k(f's_mul_i32 s23, s21, {32*ldb}')
    k(f's_mul_i32 s24, s22, {2*W}')
    k('s_add_u32 s23, s23, s24')
    k(f's_mov_b32 s25, {ldb}')
    mg = 65536 // CH + 1
    for i in range(NT // 2 + (NT % 2)):
        pass
    nins = 32 * CH // 64
    rem = 32 * CH - nins * 64
    assert rem == 0
    for i in range(nins):
        k(f'v_add_u32 v3, {64*i}, v2')
        k(f'v_mul_u32_u24 v4, {mg}, v3')
        k('v_lshrrev_b32 v4, 16, v4')
        k(f'v_mul_u32_u24 v5, {CH}, v4')
        k('v_sub_u32 v5, v3, v5')
        k('v_mul_lo_u32 v4, v4, s25')
        k('v_lshl_add_u32 v4, v5, 4, v4')
        k(f's_add_u32 m0, s{lds_base_sreg}, {1024*i}')
        k('buffer_load_dwordx4 v4, s[12:15], s23 offen lds')
    k('v_lshrrev_b32 v3, 4, v2')
    k('v_bfe_u32 v4, v2, 2, 2')
    if kmap == 'nat':
        k('v_lshl_add_u32 v4, v3, 3, v4'); hfstep = 4
    else:
        k('v_lshl_add_u32 v4, v3, 2, v4'); hfstep = 16
    k(f'v_mul_u32_u24 v4, {2*W}, v4')
    k('v_and_b32 v5, 3, v2')
    k(f'v_lshl_add_u32 v4, v5, {4 if qperm else 3}, v4')
    k(f'v_add_u32 v4, s{lds_base_sreg}, v4')
    if qperm:
        k(f's_mul_i32 s26, s22, {(K//32)*NT*1024}')
        k(f's_mul_i32 s27, s21, {NT*1024}')
    else:
        k(f's_mul_i32 s26, s21, {(N//16)*1024}')
        k(f's_mul_i32 s27, s22, {NT*1024}')
    k('s_add_u32 s26, s26, s27')
    k('v_lshlrev_b32 v5, 4, v2')
    k('s_waitcnt vmcnt(0)')
    for nt in range(NT):
        off = (64 * (nt >> 1) + 8 * (nt & 1)) if qperm else 32 * nt
        r = 8 + 4 * nt
        k(f'ds_read_b64_tr_b16 v[{r}:{r+1}], v4 offset:{off}')
        k(f'ds_read_b64_tr_b16 v[{r+2}:{r+3}], v4 offset:{off + hfstep*2*W}')
    k('s_waitcnt lgkmcnt(0)')
    for nt in range(NT):
        r = 8 + 4 * nt
        if nt % 4 == 0 and nt:
            k('s_add_u32 s26, s26, 4096')
        k(f'buffer_store_dwordx4 v[{r}:{r+3}], v5, s[16:19], s26 offen offset:{1024*(nt%4)} sc0 sc1')
    k('s_endpgm')


def emit_prep_a(k, lda, widx_sreg):
    k(f's_lshr_b32 s21, s{widx_sreg}, 3')
    k(f's_and_b32 s22, s{widx_sreg}, 7')
    k(f's_mul_i32 s23, s21, {16*lda}')
    k('s_lshl_b32 s24, s22, 9')
    k('s_add_u32 s23, s23, s24')
    k('v_and_b32 v3, 15, v2')
    k('v_lshrrev_b32 v4, 4, v2')
    k(f'v_mul_u32_u24 v3, {lda}, v3')
    k('v_lshl_add_u32 v3, v4, 3, v3')
    for i in range(8):
        k(f'buffer_load_dwordx2 v[{8+4*i}:{9+4*i}], v3, s[12:15], s23 offen offset:{64*i}')
        k(f'buffer_load_dwordx2 v[{10+4*i}:{11+4*i}], v3, s[12:15], s23 offen offset:{64*i+32}')
    k(f's_lshl_b32 s26, s{widx_sreg}, 13')
    k('v_lshlrev_b32 v5, 4, v2')
    k('s_add_u32 s27, s26, 4096')
    for i in range(8):
        k(f's_waitcnt vmcnt({14-i})')
        k(f'buffer_store_dwordx4 v[{8+4*i}:{11+4*i}], v5, s[16:19], s{26 if i < 4 else 27} offen offset:{1024*(i%4)} sc0 sc1')
    k('s_endpgm')


TASKS = {
    'wq': ('wq', 8192, 576, 4096, 128, 'nat', 'wqf', True),
    'wo': ('wo', 1152, 4096, 576, 144, 'mfma', 'wof', False),
    'w_in': ('w_in', 9216, 576, 4608, 144, 'nat', 'winf', False),
    'w_out': ('w_out', 1152, 2304, 576, 144, 'mfma', 'woutf', False),
}


def ntasks(name):
    if name == 'w_sp':
        return 1024
    if name == 'v':
        return 16 * 32 * 2
    _, _, K, N, W, _, _, _ = TASKS[name]
    return (K // 32) * (N // W)


def emit_prep_section(k, first_wg, names, waves_per_wg, done):
    k('v_lshrrev_b32 v1, 6, v0')
    k('v_and_b32 v2, 63, v0')
    k('v_readfirstlane_b32 s3, v1')
    k(f's_sub_u32 s30, s2, {first_wg}')
    k(f's_mul_i32 s30, s30, {waves_per_wg}')
    k('s_add_u32 s30, s30, s3')
    k('s_mul_i32 s31, s3, 9216')
    base = 0
    labs = []
    for n in names:
        lab = k.label('prep_' + n.replace('_', ''))
        labs.append(lab)
        k(f's_cmp_lt_u32 s30, {base + ntasks(n)}')
        k(f's_cbranch_scc1 {lab}')
        base += ntasks(n)
    k(f's_branch {done}')
    base = 0
    for n, lab in zip(names, labs):
        k(f'{lab}:')
        if base:
            k(f's_sub_u32 s30, s30, {base}')
        src = 'w_sp' if n == 'w_sp' else ('v' if n == 'v' else TASKS[n][0])
        dst = 'wspf' if n == 'w_sp' else ('vt' if n == 'v' else TASKS[n][6])
        p = load_ptrs(k, [src, 'ws'], 4)
        k('s_waitcnt lgkmcnt(0)')
        srd(k, 12, p[src], src)
        srd(k, 16, p['ws'], dst)
        if n == 'w_sp':
            emit_prep_a(k, 4096, 30)
        elif n == 'v':
            emit_prep_b(k, 'v', 256, 32768, 128, 128, 'mfma', 'vt', 30, 31)
        else:
            s_, ldb, K, N, W, kmap, d_, qp = TASKS[n]
            emit_prep_b(k, s_, ldb, K, N, W, kmap, d_, 30, 31, qp)
        base += ntasks(n)
    return (base + waves_per_wg - 1) // waves_per_wg
```

```python
from common import *
from prep import *
import math

LOG2E = 1.4426950408889634


def k_mod():
    k = Kernel('mod_kernel')
    done = k.label('done')
    vp = k.label('vprep')
    k('s_cmp_ge_u32 s2, 27')
    k(f's_cbranch_scc1 {vp}')
    p = load_ptrs(k, ['c', 'w_mod', 'ws'], 4)
    k('v_lshrrev_b32 v1, 6, v0')
    k('v_and_b32 v2, 63, v0')
    k('v_readfirstlane_b32 s3, v1')
    k('s_waitcnt lgkmcnt(0)')
    srd(k, 12, p['c'], 'c')
    srd(k, 16, p['w_mod'], 'w_mod')
    srd(k, 20, p['ws'], 'mod')
    k('s_mul_i32 s24, s3, 36*6912')
    k('s_lshl_b32 s25, s2, 8')
    k('s_add_u32 s24, s24, s25')
    k('v_lshlrev_b32 v3, 2, v2')
    k('v_lshlrev_b32 v4, 1, v0')
    k('buffer_load_ushort v5, v4, s[12:15], 0 offen')
    for i in range(36):
        k(f'buffer_load_dword v{16+i}, v3, s[16:19], s24 offen')
        if i < 35:
            k('s_add_u32 s24, s24, 6912')
    k('s_waitcnt vmcnt(36)')
    k('v_lshlrev_b32 v5, 16, v5')
    k(f'v_mul_f32 v6, {f32bits(-LOG2E)}, v5')
    k('v_exp_f32 v6, v6')
    k('v_add_f32 v6, 1.0, v6')
    k('v_rcp_f32 v7, v6')
    k('v_mul_f32 v8, v5, v7')
    k('v_fma_f32 v9, -v8, v6, v5')
    k('v_fma_f32 v8, v9, v7, v8')
    k('v_mul_f32 v9, v5, v7')
    k('v_cmp_o_f32 vcc, v8, v8')
    k('v_cndmask_b32 v8, v9, v8, vcc')
    rbf(k, 8, 8)
    k('v_lshlrev_b32 v9, 2, v0')
    k('ds_write_b32 v9, v8')
    k('s_waitcnt lgkmcnt(0)')
    k('s_barrier')
    k('s_mul_i32 s26, s3, 144')
    k('v_mov_b32 v10, s26')
    for i in range(9):
        k(f'ds_read_b128 v[{56+4*i}:{59+4*i}], v10 offset:{16*i}')
    k('v_mov_b32 v12, 0')
    k('v_mov_b32 v13, 0')
    k('s_waitcnt vmcnt(0) lgkmcnt(0)')
    for i in range(36):
        k(f'v_lshlrev_b32 v14, 16, v{16+i}')
        k(f'v_and_b32 v15, 0xffff0000, v{16+i}')
        k(f'v_fmac_f32 v12, v14, v{56+i}')
        k(f'v_fmac_f32 v13, v15, v{56+i}')
    k('v_lshlrev_b32 v9, 3, v0')
    k('ds_write_b64 v9, v[12:13] offset:4096')
    k('s_waitcnt lgkmcnt(0)')
    k('s_barrier')
    k('s_cmp_ge_u32 s3, 2')
    k(f's_cbranch_scc1 {done}')
    k('v_lshlrev_b32 v9, 2, v0')
    for i in range(16):
        k(f'ds_read_b32 v{16+i}, v9 offset:{4096+512*i}')
    k('s_waitcnt lgkmcnt(0)')
    for i in range(1, 16):
        k(f'v_add_f32 v16, v16, v{16+i}')
    rbf(k, 16, 16)
    k('s_lshl_b32 s25, s2, 9')
    k('buffer_store_dword v16, v9, s[20:23], s25 offen')
    k(f'{done}:')
    k('s_endpgm')
    k(f'{vp}:')
    nwg = emit_prep_section(k, 27, ['v', 'wq'], 16, done)
    return k, (27 + nwg, 1024, 16 * 9216)


def ln_core(k, X, n, tmp, lanes, ncols, eps=1e-5):
    s, t, mu, var, r, den = tmp, tmp + 1, tmp + 2, tmp + 3, tmp + 4, tmp + 5
    k(f'v_add_f32 v{s}, v{X}, v{X+1}')
    for i in range(2, n):
        k(f'v_add_f32 v{s}, v{s}, v{X+i}')
    reduce_add(k, s, t, lanes)
    k(f'v_mul_f32 v{mu}, {f32bits(1.0/ncols)}, v{s}')
    k(f'v_sub_f32 v{t}, v{X}, v{mu}')
    k(f'v_mul_f32 v{var}, v{t}, v{t}')
    for i in range(1, n):
        k(f'v_sub_f32 v{t}, v{X+i}, v{mu}')
        k(f'v_fmac_f32 v{var}, v{t}, v{t}')
    reduce_add(k, var, t, lanes)
    k(f'v_mul_f32 v{var}, {f32bits(1.0/ncols)}, v{var}')
    rbf(k, mu, mu)
    rbf(k, var, var)
    k(f'v_add_f32 v{var}, {f32bits(eps)}, v{var}')
    rbf(k, var, var)
    k(f'v_sqrt_f32 v{den}, v{var}')
    k(f'v_rcp_f32 v{r}, v{den}')
    k(f'v_fma_f32 v{t}, -v{den}, v{den}, v{var}')
    k(f'v_mul_f32 v{r}, 0.5, v{r}')
    k(f'v_fmac_f32 v{den}, v{t}, v{r}')
    rbf(k, den, den)
    k(f'v_rcp_f32 v{r}, v{den}')
    k(f'v_fma_f32 v{t}, -v{den}, v{r}, 1.0')
    k(f'v_fmac_f32 v{r}, v{t}, v{r}')
    for i in range(0, n, 2):
        a, b = X + i, X + i + 1
        k(f'v_sub_f32 v{a}, v{a}, v{mu}')
        k(f'v_sub_f32 v{b}, v{b}, v{mu}')
        rbf2(k, a, b, a, b, t)
        for c in (a, b):
            q, e = tmp + 6, tmp + 7
            k(f'v_mul_f32 v{q}, v{c}, v{r}')
            k(f'v_fma_f32 v{e}, -v{q}, v{den}, v{c}')
            k(f'v_fma_f32 v{c}, v{e}, v{r}, v{q}')
        rbf2(k, a, b, a, b, t)


def k_ln(which, preps=()):
    k = Kernel(f'ln{which}_kernel')
    done = k.label('done')
    pp = k.label('prep')
    k('s_cmp_ge_u32 s2, 256')
    k(f's_cbranch_scc1 {pp if preps else done}')
    p = load_ptrs(k, ['x', 'ws'], 4)
    k('v_lshrrev_b32 v1, 5, v0')
    k('v_and_b32 v2, 31, v0')
    k('s_lshl_b32 s3, s2, 3')
    k('v_add_u32 v1, s3, v1')
    k('s_waitcnt lgkmcnt(0)')
    srd(k, 12, p['x'], 'x')
    srd(k, 16, p['ws'], 'mod')
    srd(k, 20, p['ws'], 'h' if which == 1 else 'h2')
    if which == 2:
        srd(k, 24, p['ws'], 'p2')
        srd(k, 28, p['ws'], 'x1')
    k('v_mul_u32_u24 v3, 1152, v1')
    k('v_lshl_add_u32 v3, v2, 2, v3')
    k('v_lshlrev_b32 v4, 3, v2')
    X = 16
    RAW = 40
    SH = 52
    SC = 72
    GA = 92
    PART = 112
    for i in range(9):
        k(f'buffer_load_dword v{RAW+i}, v3, s[12:15], 0 offen offset:{128*i}')
    js, jc = (0, 1) if which == 1 else (3, 4)
    k(f's_mov_b32 s32, {js*2304}')
    k(f's_mov_b32 s33, {jc*2304}')
    k(f's_mov_b32 s34, {2*2304}')
    for i in range(9):
        k(f'buffer_load_dwordx2 v[{SH+2*i}:{SH+2*i+1}], v4, s[16:19], s32 offen offset:{256*i}')
        k(f'buffer_load_dwordx2 v[{SC+2*i}:{SC+2*i+1}], v4, s[16:19], s33 offen offset:{256*i}')
    if which == 2:
        for i in range(9):
            k(f'buffer_load_dwordx2 v[{GA+2*i}:{GA+2*i+1}], v4, s[16:19], s34 offen offset:{256*i}')
        k('v_lshlrev_b32 v5, 1, v3')
        for sp in range(4):
            k(f's_mov_b32 s35, {sp*2048*2304}')
            for i in range(9):
                k(f'buffer_load_dwordx2 v[{PART+18*sp+2*i}:{PART+18*sp+2*i+1}], v5, s[24:27], s35 offen offset:{256*i}')
    k('s_waitcnt vmcnt(0)')
    for i in range(9):
        k(f'v_lshlrev_b32 v{X+2*i}, 16, v{RAW+i}')
        k(f'v_and_b32 v{X+2*i+1}, 0xffff0000, v{RAW+i}')
    if which == 2:
        for i in range(18):
            k(f'v_add_f32 v{PART+i}, v{PART+i}, v{PART+18+i}')
            k(f'v_add_f32 v{PART+36+i}, v{PART+36+i}, v{PART+54+i}')
            k(f'v_add_f32 v{PART+i}, v{PART+i}, v{PART+36+i}')
        for i in range(0, 18, 2):
            a, b = PART + i, PART + i + 1
            rbf2(k, a, b, a, b, 6)
            k(f'v_mul_f32 v{a}, v{GA+i}, v{a}')
            k(f'v_mul_f32 v{b}, v{GA+i+1}, v{b}')
            rbf2(k, a, b, a, b, 6)
            k(f'v_add_f32 v{X+i}, v{X+i}, v{a}')
            k(f'v_add_f32 v{X+i+1}, v{X+i+1}, v{b}')
            k(f'v_cvt_pk_bf16_f32 v{RAW+i//2}, v{X+i}, v{X+i+1}')
            k(f'v_lshlrev_b32 v{X+i}, 16, v{RAW+i//2}')
            k(f'v_and_b32 v{X+i+1}, 0xffff0000, v{RAW+i//2}')
            k(f'buffer_store_dword v{RAW+i//2}, v3, s[28:31], 0 offen offset:{128*(i//2)}')
    ln_core(k, X, 18, 6, 32, 576)
    k('v_lshrrev_b32 v5, 4, v1')
    k('v_mul_u32_u24 v5, 18432, v5')
    k('v_lshrrev_b32 v6, 4, v2')
    k('v_lshl_add_u32 v5, v6, 10, v5')
    k('v_bfe_u32 v6, v2, 2, 2')
    k('v_lshl_add_u32 v5, v6, 8, v5')
    k('v_and_b32 v6, 15, v1')
    k('v_lshl_add_u32 v5, v6, 4, v5')
    k('v_and_b32 v6, 3, v2')
    k('v_lshl_add_u32 v5, v6, 2, v5')
    for i in range(0, 18, 2):
        a, b = X + i, X + i + 1
        k(f'v_add_f32 v{SC+i}, 1.0, v{SC+i}')
        k(f'v_add_f32 v{SC+i+1}, 1.0, v{SC+i+1}')
        rbf2(k, SC + i, SC + i + 1, SC + i, SC + i + 1, 6)
        k(f'v_mul_f32 v{a}, v{a}, v{SC+i}')
        k(f'v_mul_f32 v{b}, v{b}, v{SC+i+1}')
        rbf2(k, a, b, a, b, 6)
        k(f'v_add_f32 v{a}, v{a}, v{SH+i}')
        k(f'v_add_f32 v{b}, v{b}, v{SH+i+1}')
        k(f'v_cvt_pk_bf16_f32 v{a}, v{a}, v{b}')
        k(f's_mov_b32 s36, {2048*(i//2)}')
        k(f'buffer_store_dword v{a}, v5, s[20:23], s36 offen')
    k(f'{done}:')
    k('s_endpgm')
    nwg = 0
    if preps:
        k(f'{pp}:')
        nwg = emit_prep_section(k, 256, list(preps), 4, done)
    return k, (256 + nwg, 256, 4 * 9216 if preps else 0)


def k_lnz():
    k = Kernel('lnz_kernel')
    done = k.label('done')
    k('s_cmp_ge_u32 s2, 256')
    k(f's_cbranch_scc1 {done}')
    p = load_ptrs(k, ['ws'], 4)
    k('v_lshrrev_b32 v1, 6, v0')
    k('v_and_b32 v2, 63, v0')
    k('v_readfirstlane_b32 s22, v1')
    k('v_and_b32 v4, 3, v2')
    k('v_bfe_u32 v5, v2, 2, 2')
    k('v_lshrrev_b32 v1, 4, v2')
    k('v_lshlrev_b32 v3, 4, v4')
    k('v_lshl_add_u32 v3, v5, 8, v3')
    k('v_lshl_add_u32 v3, v1, 10, v3')
    k('s_lshr_b32 s25, s2, 2')
    k('s_and_b32 s26, s2, 3')
    k(f's_mul_i32 s20, s25, {288*1024}')
    k('s_mul_i32 s21, s22, 12288')
    k('s_add_u32 s20, s20, s21')
    k('s_lshl_b32 s27, s26, 6')
    k('s_add_u32 s20, s20, s27')
    k(f's_add_u32 s20, s20, {144*1024}')
    k('s_add_u32 s28, s20, 4096')
    k('s_add_u32 s29, s20, 8192')
    k(f's_mul_i32 s24, s25, {144*1024}')
    k('s_add_u32 s24, s24, s21')
    k('s_lshl_b32 s27, s26, 8')
    k('s_add_u32 s24, s24, s27')
    k('s_waitcnt lgkmcnt(0)')
    srd(k, 12, p['ws'], 'z')
    srd(k, 16, p['ws'], 'z2')
    RAW = 16
    X = 28
    for i, sr_ in enumerate((20, 28, 29)):
        k(f'buffer_load_dwordx4 v[{RAW+4*i}:{RAW+4*i+3}], v3, s[12:15], s{sr_} offen')
    k('s_waitcnt vmcnt(0)')
    for i in range(3):
        for hf in range(2):
            for d in range(2):
                k(f'v_lshlrev_b32 v{X+12*hf+4*i+2*d}, 16, v{RAW+4*i+2*hf+d}')
                k(f'v_and_b32 v{X+12*hf+4*i+2*d+1}, 0xffff0000, v{RAW+4*i+2*hf+d}')

    def wg_reduce(regs, ldsoff):
        for r_ in regs:
            k(f'v_add_f32_dpp v{r_}, v{r_}, v{r_} row_shr:4 row_mask:0xf bank_mask:0xf' if False else
              f'v_add_f32_dpp v{r_}, v{r_}, v{r_} row_ror:4 row_mask:0xf bank_mask:0xf')
        for r_ in regs:
            k(f'v_add_f32_dpp v{r_}, v{r_}, v{r_} row_ror:8 row_mask:0xf bank_mask:0xf')
        k('v_lshlrev_b32 v6, 9, v4')
        k('v_lshl_add_u32 v6, v1, 3, v6')
        k('s_lshl_b32 s23, s22, 5')
        k('v_add_u32 v6, s23, v6')
        k(f'ds_write_b64 v6, v[{regs[0]}:{regs[1]}] offset:{ldsoff}')
        k('s_waitcnt lgkmcnt(0)')
        k('s_barrier')
        k('v_lshl_add_u32 v7, v1, 2, v5')
        k('v_mul_u32_u24 v7, 24, v7')
        k('v_lshl_add_u32 v7, v4, 9, v7')
        for e in range(3):
            k(f'ds_read_b64 v[{RAW+2*e}:{RAW+2*e+1}], v7 offset:{ldsoff+8*e}')
        k('s_waitcnt lgkmcnt(0)')
        for h_ in range(2):
            k(f'v_add_f32 v{regs[h_]}, v{RAW+h_}, v{RAW+2+h_}')
            k(f'v_add_f32 v{regs[h_]}, v{regs[h_]}, v{RAW+4+h_}')
        for r_ in regs:
            k(f'v_add_f32_dpp v{r_}, v{r_}, v{r_} row_ror:4 row_mask:0xf bank_mask:0xf')
        for r_ in regs:
            k(f'v_add_f32_dpp v{r_}, v{r_}, v{r_} row_ror:8 row_mask:0xf bank_mask:0xf')
        k(f'ds_swizzle_b32 v6, v{regs[0]} offset:0x401F')
        k(f'ds_swizzle_b32 v7, v{regs[1]} offset:0x401F')
        k('s_waitcnt lgkmcnt(0)')
        k(f'v_add_f32 v{regs[0]}, v{regs[0]}, v6')
        k(f'v_add_f32 v{regs[1]}, v{regs[1]}, v7')
        for r_ in regs:
            k(f'v_mov_b32 v6, v{r_}')
            k(f'v_permlane32_swap_b32 v6, v{r_}')
            k(f'v_add_f32 v{r_}, v{r_}, v6')
    MU, VA, DEN, RC = 8, 10, 12, 14
    for hf in range(2):
        k(f'v_add_f32 v{MU+hf}, v{X+12*hf}, v{X+12*hf+1}')
        for i in range(2, 12):
            k(f'v_add_f32 v{MU+hf}, v{MU+hf}, v{X+12*hf+i}')
    wg_reduce([MU, MU + 1], 0)
    for hf in range(2):
        k(f'v_mul_f32 v{MU+hf}, {f32bits(1.0/2304)}, v{MU+hf}')
        k(f'v_mov_b32 v{VA+hf}, 0')
        for i in range(12):
            k(f'v_sub_f32 v6, v{X+12*hf+i}, v{MU+hf}')
            k(f'v_fmac_f32 v{VA+hf}, v6, v6')
    wg_reduce([VA, VA + 1], 2048)
    RS = 4608 + 64
    for hf in range(2):
        mu, var, den, r = MU + hf, VA + hf, DEN + hf, RC + hf
        k(f'v_mul_f32 v{var}, {f32bits(1.0/2304)}, v{var}')
        rbf(k, mu, mu)
        rbf(k, var, var)
        k(f'v_add_f32 v{var}, {f32bits(1e-5)}, v{var}')
        rbf(k, var, var)
        k(f'v_sqrt_f32 v{den}, v{var}')
        k(f'v_rcp_f32 v{r}, v{den}')
        k(f'v_fma_f32 v6, -v{den}, v{den}, v{var}')
        k(f'v_mul_f32 v{r}, 0.5, v{r}')
        k(f'v_fmac_f32 v{den}, v6, v{r}')
        rbf(k, den, den)
        k(f'v_rcp_f32 v{r}, v{den}')
        k(f'v_fma_f32 v6, -v{den}, v{r}, 1.0')
        k(f'v_fmac_f32 v{r}, v6, v{r}')
    k('s_mul_i32 s23, s22, 384')
    k('s_add_u32 s23, s23, 4096')
    k(f'v_mul_u32_u24 v7, {RS}, v4')
    k('v_lshl_add_u32 v7, v5, 3, v7')
    k('v_lshl_add_u32 v7, v1, 5, v7')
    k('v_add_u32 v7, s23, v7')
    for hf in range(2):
        mu, den, r = MU + hf, DEN + hf, RC + hf
        for i in range(3):
            x = X + 12 * hf + 4 * i
            for c in range(4):
                k(f'v_sub_f32 v{x+c}, v{x+c}, v{mu}')
            rbf2(k, x, x + 1, x, x + 1, 6)
            rbf2(k, x + 2, x + 3, x + 2, x + 3, 6)
            for c in range(4):
                k(f'v_mul_f32 v16, v{x+c}, v{r}')
                k(f'v_fma_f32 v17, -v16, v{den}, v{x+c}')
                k(f'v_fma_f32 v{x+c}, v17, v{r}, v16')
            k(f'v_cvt_pk_bf16_f32 v{x}, v{x}, v{x+1}')
            k(f'v_cvt_pk_bf16_f32 v{x+1}, v{x+2}, v{x+3}')
            k(f'ds_write_b64 v7, v[{x}:{x+1}] offset:{4*RS*hf + 128*i}')
    k(f'v_mul_u32_u24 v6, {RS}, v5')
    k('v_lshl_add_u32 v6, v4, 3, v6')
    k('v_lshl_add_u32 v6, v1, 5, v6')
    k('v_add_u32 v6, s23, v6')
    k('v_and_b32 v3, 15, v2')
    k('v_lshlrev_b32 v3, 4, v3')
    k('v_lshl_add_u32 v3, v1, 10, v3')
    k('s_waitcnt lgkmcnt(0)')
    for i in range(3):
        k(f'ds_read_b64_tr_b16 v[{RAW+4*i}:{RAW+4*i+1}], v6 offset:{128*i}')
        k(f'ds_read_b64_tr_b16 v[{RAW+4*i+2}:{RAW+4*i+3}], v6 offset:{128*i+4*RS}')
    k('s_waitcnt lgkmcnt(0)')
    for i in range(3):
        k(f'buffer_store_dwordx4 v[{RAW+4*i}:{RAW+4*i+3}], v3, s[16:19], s24 offen sc0 sc1')
        k('s_add_u32 s24, s24, 4096')
    k(f'{done}:')
    k('s_endpgm')
    return k, (256, 768, 4096 + 8 * RS)


def k_final():
    k = Kernel('final_kernel')
    done = k.label('done')
    k('s_cmp_ge_u32 s2, 1152')
    k(f's_cbranch_scc1 {done}')
    p = load_ptrs(k, ['out', 'ws'], 4)
    k('s_lshl_b32 s3, s2, 8')
    k('v_add_u32 v1, s3, v0')
    k('s_waitcnt lgkmcnt(0)')
    srd(k, 12, p['ws'], 'p5')
    srd(k, 16, p['ws'], 'x1')
    srd(k, 20, p['out'], 'out')
    srd(k, 24, p['ws'], 'mod')
    k('v_lshlrev_b32 v2, 4, v1')
    k('v_lshlrev_b32 v3, 3, v1')
    k('s_mov_b32 s28, 29826162')
    k('v_mul_hi_u32 v4, v1, s28')
    k('v_mul_u32_u24 v4, 144, v4')
    k('v_sub_u32 v4, v1, v4')
    k('v_lshlrev_b32 v4, 4, v4')
    for sp in range(4):
        k(f's_mov_b32 s29, {sp*2048*2304}')
        k(f'buffer_load_dwordx4 v[{8+4*sp}:{11+4*sp}], v2, s[12:15], s29 offen')
    k('buffer_load_dwordx2 v[24:25], v3, s[16:19], 0 offen')
    k(f's_mov_b32 s29, {5*2304}')
    k('buffer_load_dwordx4 v[28:31], v4, s[24:27], s29 offen')
    k('s_waitcnt vmcnt(0)')
    for i in range(4):
        k(f'v_add_f32 v{8+i}, v{8+i}, v{12+i}')
        k(f'v_add_f32 v{16+i}, v{16+i}, v{20+i}')
        k(f'v_add_f32 v{8+i}, v{8+i}, v{16+i}')
    for i in (0, 2):
        a, b = 8 + i, 9 + i
        rbf2(k, a, b, a, b, 6)
        k(f'v_mul_f32 v{a}, v{28+i}, v{a}')
        k(f'v_mul_f32 v{b}, v{29+i}, v{b}')
        rbf2(k, a, b, a, b, 6)
        k(f'v_lshlrev_b32 v6, 16, v{24+i//2}')
        k(f'v_and_b32 v7, 0xffff0000, v{24+i//2}')
        k(f'v_add_f32 v{a}, v{a}, v6')
        k(f'v_add_f32 v{b}, v{b}, v7')
        k(f'v_cvt_pk_bf16_f32 v{32+i//2}, v{a}, v{b}')
    k('buffer_store_dwordx2 v[32:33], v3, s[20:23], 0 offen')
    k(f'{done}:')
    k('s_endpgm')
    return k, (1152, 256, 0)
```

```python
import sys
from common import *
from small import *
from gemm import *
from attn import *
from attn16 import *
from gemm2 import *
from gemm3 import *

def build(rounding=True, stamp=False):
    R1 = 8
    R1 = 4
    ks = [k_mod(), k_ln(1, ('wo', 'w_in', 'w_out', 'w_sp')), k_attn16(stamp=(stamp == 'attn')),
          k_gemm3('g2_kernel', 'o', 131072, 'wof', 36, 16, 1, 4, 4, 'part2', stamp=(stamp == 'g2'), R=R1),
          k_ln(2),
          k_gemm3('g3_kernel', 'h2', 18432, 'winf', 288, 9, 2, 16, 1, 'gelu', stamp=(stamp == 'g3')),
          k_lnz(),
          k_gemm3('g4_kernel', 'wspf', 65536, 'z2', 144, 32, 1, 16, 1, 'gate', stamp=(stamp == 'g4'), R=R1),
          k_gemm3('g5_kernel', 'y', 73728, 'woutf', 36, 9, 1, 4, 4, 'part5', stamp=(stamp == 'g5'), R=R1),
          k_final()]
    ref = open('adaLN_cond__gqa_block_cached__mixer_gmlp__prompt.s.ref').read()
    hdr = ''.join(l + '\n' for l in ref.split('\n') if l.startswith(';') and '@launch' not in l and 'Override' not in l and 'grid=ceil' not in l)
    for k, (g, b, lds) in ks:
        hdr += f'; @launch kernel={k.name} grid=({g},1,1) block=({b},1,1) lds={lds}\n'
    body = '.amdgcn_target "amdgcn-amd-amdhsa--gfx950"\n.text\n'
    for k, _ in ks:
        body += f'.globl {k.name}\n.type {k.name},@function\n' + k.text()
    body += '.section .rodata,"a"\n'
    for k, _ in ks:
        body += k.desc()
    import re
    body = re.sub(r'(buffer_store_dword[x24]* .* offen( offset:[0-9]+)?)\n', r'\1 sc0 sc1\n', body)
    return hdr + body

if __name__ == '__main__':
    out = sys.argv[1] if len(sys.argv) > 1 else 'adaLN_cond__gqa_block_cached__mixer_gmlp__prompt.s'
    rounding = 'round' in sys.argv[2:]
    open(out, 'w').write(build(rounding, sys.argv[2] if len(sys.argv) > 2 else False))
```

```python
from common import *
from attn import Cnt
from prep import emit_prep_inline
import math
import numpy as np

LOG2E = 1.4426950408889634
MF = 'v_mfma_f32_16x16x32_bf16'


def k_attn16(stamp=False, BAR=10, prio=False, preps=()):
    k = Kernel('attn_kernel')
    done = k.label('done')
    k('s_cmp_ge_u32 s2, 256')
    k(f's_cbranch_scc1 {done}')
    p = load_ptrs(k, ['k', 'v', 'wq', 'ws'], 4)
    k('s_and_b32 s40, s2, 7')
    k('s_lshr_b32 s41, s2, 3')
    k('s_lshr_b32 s42, s41, 4')
    k('s_lshl_b32 s43, s40, 1')
    k('s_add_u32 s42, s42, s43')
    k('s_bfe_u32 s43, s41, 0x10003')
    k('s_lshl_b32 s44, s42, 1')
    k('s_add_u32 s43, s43, s44')
    k('s_and_b32 s44, s41, 7')
    k('v_lshrrev_b32 v1, 6, v0')
    k('v_and_b32 v2, 63, v0')
    k('v_readfirstlane_b32 s45, v1')
    k('s_waitcnt lgkmcnt(0)')
    srd(k, 12, p['k'], 'k')
    srd(k, 16, p['ws'], 'vt')
    srd(k, 20, p['ws'], 'wqf')
    srd(k, 24, p['ws'], 'h')
    srd(k, 28, p['ws'], 'o')
    QF = 8
    O = QF + 32
    S = O + 64
    P = S + 64
    FB = P + 32
    NB = 8
    KAD = FB + 32
    NM = KAD + 4
    DK = NM + 8
    DV = DK + 2
    VAD = 247
    LL = 250
    ONES = 252
    TA = (0, 1)
    TB = (6, 7)
    HOFF = QF
    QA = QF + 1
    DW = QF + 9
    k(f's_mov_b32 s62, {f32bits(LOG2E * 128 ** -0.5)}')
    k(f's_mov_b32 s63, {f32bits(-1.0)}')
    k('v_and_b32 v3, 15, v2')
    k('v_lshrrev_b32 v4, 4, v2')
    k('s_lshl_b32 s46, s44, 8')
    k('s_lshl_b32 s47, s45, 5')
    k('s_add_u32 s46, s46, s47')
    k('s_mul_i32 s47, s46, 1152')
    k(f'v_lshlrev_b32 v{HOFF}, 4, v2')
    k(f'v_add_u32 v{HOFF}, s47, v{HOFF}')
    k('v_xor_b32 v6, v3, v4')
    k('v_lshlrev_b32 v7, 8, v3')
    for t in range(4):
        k(f'v_xor_b32 v1, {4*t}, v6')
        k(f'v_lshl_add_u32 v{KAD+t}, v1, 4, v7')
    k(f'v_lshlrev_b32 v{QA}, 4, v2')
    k(f'v_add_u32 v{VAD}, 0x10000, v{QA}')
    k('v_lshrrev_b32 v5, 4, v2')
    k('v_and_b32 v6, 15, v2')
    k('s_lshl_b32 s47, s45, 3')
    for e in range(2):
        k(f'v_add_u32 v7, s47, v5')
        if e:
            k('v_add_u32 v7, 4, v7')
        k('v_and_b32 v1, 15, v7')
        k('v_xor_b32 v1, v1, v6')
        k('v_lshlrev_b32 v0, 8, v7')
        k(f'v_lshl_add_u32 v{DK+e}, v1, 4, v0')
    k('s_lshl_b32 s50, s45, 11')
    k(f'v_lshlrev_b32 v{DV}, 4, v2')
    k(f'v_add_u32 v{DV}, s50, v{DV}')
    k('s_mul_i32 s51, s43, 147456')
    k('s_lshl_b32 s52, s42, 19')
    k('s_mov_b32 s53, s52')
    k('s_add_u32 s57, s52, 0x80000')
    k('s_mov_b32 s59, 0x70000000')

    vm = Cnt(k, 'vmcnt', 63)
    lg = Cnt(k, 'lgkmcnt', 15)

    def st(i):
        if stamp:
            k(f's_memtime s[{70+2*i}:{71+2*i}]')
    st(0)
    if stamp:
        k('s_memrealtime s[80:81]')

    def hreg(c, t, qb):
        return S + (c % 6) * 16 + 8 * t + 4 * qb

    def dma_k_parts(slot, tag):
        def a():
            k('s_cmp_ge_u32 s52, s57')
            k('s_cselect_b32 s58, s59, s52')
            k(f's_add_u32 m0, s50, {slot*16384}')
            k(f'buffer_load_dwordx4 v{DK}, s[12:15], s58 offen lds')
            vm.add(tag, 1)
        def b():
            k(f's_add_u32 m0, s50, {slot*16384+1024}')
            k(f'buffer_load_dwordx4 v{DK+1}, s[12:15], s58 offen lds')
            k('s_add_u32 s52, s52, 16384')
            vm.add(tag, 1)
        return [a, b]

    def dma_v_parts(slot, tag):
        def a():
            k('s_cmp_ge_u32 s53, s57')
            k('s_cselect_b32 s55, s59, s53')
            k(f's_add_u32 m0, s50, {65536+slot*16384}')
            k(f'buffer_load_dwordx4 v{DV}, s[16:19], s55 offen lds')
            vm.add(tag, 1)
        def b():
            k(f's_add_u32 m0, s50, {65536+slot*16384}')
            k(f'buffer_load_dwordx4 v{DV}, s[16:19], s55 offen offset:1024 lds')
            k('s_add_u32 s53, s53, 16384')
            vm.add(tag, 1)
        return [a, b]

    def load_h_parts(c):
        out = []
        for t in range(2):
            for qb in range(2):
                def f(t=t, qb=qb):
                    r = hreg(c, t, qb)
                    k(f's_mov_b32 s54, {2048*c + 18432*qb}')
                    k(f'buffer_load_dwordx4 v[{r}:{r+3}], v{HOFF}, s[24:27], s54 offen offset:{1024*t}')
                    vm.add(('w', c), 1)
                out.append(f)
        return out

    def dma_wq_parts(c):
        def a():
            k(f's_add_u32 m0, s50, {65536 + ((c + 3) % 4) * 16384}')
            k(f'buffer_load_dwordx4 v{DV}, s[20:23], s51 offen lds')
            vm.add(('w', c), 1)
        def b():
            k(f's_add_u32 m0, s50, {65536 + ((c + 3) % 4) * 16384}')
            k(f'buffer_load_dwordx4 v{DV}, s[20:23], s51 offen offset:1024 lds')
            k(f's_add_u32 s51, s51, 16384')
            vm.add(('w', c), 1)
        return [a, b]

    for c in range(3):
        for f in dma_wq_parts(c) + load_h_parts(c):
            f()
    PA, PB, PD = QF + 2, QF + 3, QF + 4
    if preps:
        k('s_lshl_b32 s64, s2, 3')
        k('s_add_u32 s64, s64, s45')
        k('s_mul_i32 s65, s45, 9216')
        k('s_cmp_eq_u32 s45, 7')
        k('s_cselect_b32 s65, 131072, s65')
        k(f's_load_dwordx2 s[68:69], s[0:1], {KA["w_in"]}')
        k(f's_load_dwordx2 s[70:71], s[0:1], {KA["w_sp"]}')
        o0 = WS['winf'][0]; oend = WS['wspf'][0] + WS['wspf'][1]
        k(f's_add_u32 s80, s10, {hex(o0)}')
        k('s_addc_u32 s81, s11, 0')
        k(f's_mov_b32 s82, {hex(oend - o0)}')
        k('s_mov_b32 s83, 0x00020000')
        la = k.label('pa'); lj = k.label('pj')
        k('s_waitcnt lgkmcnt(0)')
        k('s_cmp_ge_u32 s64, 576')
        k(f's_cbranch_scc1 {la}')
        k('s_mov_b32 s76, s68')
        k('s_mov_b32 s77, s69')
        k(f's_mov_b32 s78, {SIZES["w_in"]}')
        k('s_mov_b32 s79, 0x00020000')
        k('s_lshr_b32 s66, s64, 5')
        k('s_and_b32 s67, s64, 31')
        k(f's_mul_i32 s72, s66, {32*9216}')
        k('s_mul_i32 s73, s67, 288')
        k('s_add_u32 s72, s72, s73')
        for i in range(9):
            k(f'v_add_u32 v3, {64*i}, v2')
            k('v_mul_u32_u24 v4, 3641, v3')
            k('v_lshrrev_b32 v4, 16, v4')
            k('v_mul_u32_u24 v5, 18, v4')
            k('v_sub_u32 v5, v3, v5')
            k('v_mul_u32_u24 v4, 9216, v4')
            k('v_lshl_add_u32 v4, v5, 4, v4')
            k(f's_add_u32 m0, s65, {1024*i}')
            k('buffer_load_dwordx4 v4, s[76:79], s72 offen lds')
        k('v_lshrrev_b32 v3, 2, v2')
        k('v_mul_u32_u24 v3, 288, v3')
        k('v_and_b32 v4, 3, v2')
        k('v_lshl_add_u32 v3, v4, 3, v3')
        k(f'v_add_u32 v{PA}, s65, v3')
        k(f's_mul_i32 s74, s66, {288*1024}')
        k('s_mul_i32 s75, s67, 9216')
        k('s_add_u32 s74, s74, s75')
        k('s_add_u32 s75, s74, 8192')
        k('s_mov_b32 s84, 0')
        k(f's_branch {lj}')
        k(f'{la}:')
        k('s_mov_b32 s76, s70')
        k('s_mov_b32 s77, s71')
        k(f's_mov_b32 s78, {SIZES["w_sp"]}')
        k('s_mov_b32 s79, 0x00020000')
        k('s_sub_u32 s66, s64, 576')
        k('s_lshr_b32 s67, s66, 3')
        k('s_lshl_b32 s72, s67, 16')
        k('s_and_b32 s67, s66, 7')
        k('s_lshl_b32 s67, s67, 9')
        k('s_add_u32 s72, s72, s67')
        k('v_lshrrev_b32 v3, 5, v2')
        k('v_and_b32 v4, 31, v2')
        k('v_lshlrev_b32 v3, 12, v3')
        k('v_lshl_add_u32 v3, v4, 4, v3')
        for i in range(9):
            k(f's_add_u32 m0, s65, {1024*i}')
            if i == 8:
                k('s_mov_b32 s72, 0x70000000')
            k('buffer_load_dwordx4 v3, s[76:79], s72 offen lds')
            if i < 7:
                k('s_add_u32 s72, s72, 8192')
        k('v_and_b32 v3, 15, v2')
        k('v_lshrrev_b32 v4, 4, v2')
        k('v_lshlrev_b32 v3, 9, v3')
        k('v_lshl_add_u32 v3, v4, 3, v3')
        k(f'v_add_u32 v{PA}, s65, v3')
        k('s_lshl_b32 s74, s66, 13')
        k(f's_add_u32 s74, s74, {WS["wspf"][0] - o0}')
        k('s_mov_b32 s75, 0x70000000')
        k('s_mov_b32 s84, 1')
        k(f'{lj}:')
        k.fence(2)
        vm.add(('prep', 0), 9)

    def prep_phase2():
        vm.wait(('prep', 0))
        k(f'v_lshlrev_b32 v{PB}, 4, v2')
        for half, nts in enumerate((range(0, 5), range(5, 9))):
            la = k.label('qa'); lj = k.label('qj')
            k('s_cmp_eq_u32 s84, 1')
            k(f's_cbranch_scc1 {la}')
            for i, nt in enumerate(nts):
                r = PD + 4 * i
                k(f'ds_read_b64_tr_b16 v[{r}:{r+1}], v{PA} offset:{32*nt}')
                k(f'ds_read_b64_tr_b16 v[{r+2}:{r+3}], v{PA} offset:{32*nt + 16*288}')
            k(f's_branch {lj}')
            k(f'{la}:')
            for i, nt in enumerate(nts):
                r = PD + 4 * i
                k(f'ds_read_b64 v[{r}:{r+1}], v{PA} offset:{64*(nt%8)}')
                k(f'ds_read_b64 v[{r+2}:{r+3}], v{PA} offset:{64*(nt%8)+32}')
            k(f'{lj}:')
            k('s_waitcnt lgkmcnt(0)')
            for i, nt in enumerate(nts):
                r = PD + 4 * i
                if nt == 4:
                    k('s_add_u32 s74, s74, 4096')
                so = 75 if nt == 8 else 74
                k(f'buffer_store_dwordx4 v[{r}:{r+3}], v{PB}, s[80:83], s{so} offen offset:{1024*(nt%4)} NOSC')
                vm.add(('pst', nt), 1)
    for i in range(64):
        k(f'v_mov_b32 v{O+i}, 0')
    fbn = {'r': 0, 'u': 0}

    def rd_tr(areg, off, tag):
        b = FB + 4 * (fbn['r'] % NB); fbn['r'] += 1
        k(f'ds_read_b64_tr_b16 v[{b}:{b+1}], v{areg} offset:{off}')
        k(f'ds_read_b64_tr_b16 v[{b+2}:{b+3}], v{areg} offset:{off+4096}')
        lg.add(tag, 2)

    def rd_k(areg, off, tag):
        b = FB + 4 * (fbn['r'] % NB); fbn['r'] += 1
        k(f'ds_read_b128 v[{b}:{b+3}], v{areg} offset:{off}')
        lg.add(tag, 1)

    def use_frag(tag, nxt=None):
        if tag in lg.q:
            lg.wait(nxt if (nxt is not None and nxt in lg.q) else tag)
        b = FB + 4 * (fbn['u'] % NB); fbn['u'] += 1
        return b

    def oreg(Db, qb):
        return O + 8 * Db + 4 * qb

    AH = 6
    kvpro = {6: dma_k_parts(0, ('k', 0)) + dma_k_parts(1, ('g', -3)) + dma_v_parts(0, ('g', -3)),
             7: dma_k_parts(2, ('g', -2)) + dma_v_parts(1, ('g', -2)),
             8: dma_k_parts(3, ('g', -1)) + dma_v_parts(2, ('g', -1))}
    for c in range(9):
        vm.wait(('w', c))
        k('s_barrier')
        if preps and c == 2:
            prep_phase2()
        pend = []
        if c + 3 < 9:
            pend = dma_wq_parts(c + 3) + load_h_parts(c + 3)
        else:
            pend = kvpro[c]
        cb = ((c + 3) % 4) * 16384
        seq = [(t, Db) for t in range(2) for Db in range(8)]
        for i in range(AH):
            t, Db = seq[i]
            rd_k(VAD, cb + (t * 8 + Db) * 1024, (c, t, Db))
        for i, (t, Db) in enumerate(seq):
            if i + AH < 16:
                t2, D2 = seq[i + AH]
                rd_k(VAD, cb + (t2 * 8 + D2) * 1024, (c, t2, D2))
            b = use_frag((c, t, Db))
            for qb in range(2):
                hr = hreg(c, t, qb)
                d = oreg(Db, qb)
                k(f'{MF} v[{d}:{d+3}], v[{b}:{b+3}], v[{hr}:{hr+3}], v[{d}:{d+3}]')
            if pend and i % 2 == 1:
                pend.pop(0)()
        assert not pend
    k('v_cmp_gt_u32 vcc, 32, v2')
    for qb in range(2):
        for tq in range(4):
            a, b = oreg(2 * tq, qb), oreg(2 * tq + 1, qb)
            for i in range(4):
                k(f'v_mul_f32 v{a+i}, s62, v{a+i}')
                k(f'v_mul_f32 v{b+i}, s62, v{b+i}')
            q = QF + 16 * qb + 4 * tq
            k(f'v_cvt_pk_bf16_f32 v{q}, v{a}, v{a+1}')
            k(f'v_cvt_pk_bf16_f32 v{q+1}, v{a+2}, v{a+3}')
            k(f'v_cvt_pk_bf16_f32 v{q+2}, v{b}, v{b+1}')
            k(f'v_cvt_pk_bf16_f32 v{q+3}, v{b+2}, v{b+3}')
    for i in range(64):
        k(f'v_mov_b32 v{O+i}, 0')
    for i in range(16):
        k(f'v_mov_b32 v{P+16+i}, 0')
    for qb in range(2):
        for i in range(4):
            k(f'v_mov_b32 v{NM+4*qb+i}, 0')
        k(f'v_mov_b32 v{LL+qb}, 0')
    k(f's_mov_b32 s61, {f32bits(-3.0e38)}')
    for i in range(4):
        k(f'v_mov_b32 v{ONES+i}, 0x3f803f80')

    def sreg(j, kb, qb):
        return S + 32 * (j & 1) + 8 * kb + 4 * qb

    def preg(j, u, qb):
        return P + 16 * (j & 1) + 8 * u + 4 * qb

    def qk_ops(j):
        slot = j % 4
        ops = []
        for kb in range(4):
            for t in range(4):
                tag = ('qk', j, kb, t)
                rd = (lambda t=t, kb=kb, tag=tag: rd_k(KAD + t, slot * 16384 + kb * 4096, tag))
                mfs = []
                for qb in range(2):
                    d = sreg(j, kb, qb)
                    c = f'v[{NM+4*qb}:{NM+4*qb+3}]' if t == 0 else f'v[{d}:{d+3}]'
                    q = QF + 16 * qb + 4 * t
                    mfs.append(lambda b, d=d, c=c, q=q: f'{MF} v[{d}:{d+3}], v[{b}:{b+3}], v[{q}:{q+3}], {c}')
                ops.append((rd, mfs, tag))
        return ops

    def pv_ops(j):
        slot = j % 4
        ops = []
        for u in range(2):
            for Db in range(8):
                tag = ('pv', j, u, Db)
                rd = (lambda u=u, Db=Db, tag=tag: rd_k(VAD, slot * 16384 + (u * 8 + Db) * 1024, tag))
                mfs = []
                for qb in range(2):
                    d = oreg(Db, qb)
                    pr = preg(j, u, qb)
                    mfs.append(lambda b, d=d, pr=pr: f'{MF} v[{d}:{d+3}], v[{b}:{b+3}], v[{pr}:{pr+3}], v[{d}:{d+3}]')
                ops.append((rd, mfs, tag))
        return ops

    def sm_pair(a0, a1, pd, tt, qb, first):
        e0, e1 = tt
        s = [f'v_exp_f32 v{e0}, v{a0}',
             f'v_exp_f32 v{e1}, v{a1}',
             f'v_cvt_pk_bf16_f32 v{pd}, v{e0}, v{e1}']
        return s

    def sm_stream(j):
        out = []
        for kb in range(4):
            for hh in range(2):
                prs = []
                for qb in range(2):
                    a = sreg(j, kb, qb) + 2 * hh
                    pd = preg(j, kb >> 1, qb) + 2 * (kb & 1) + hh
                    prs.append(sm_pair(a, a + 1, pd, TA if qb == 0 else TB, qb, kb == 0 and hh == 0))
                x, y = prs
                merged = x[:2] + y[:2]
                x = x[2:]
                y = y[2:]
                x, y = y, x
                while x or y:
                    if y: merged.append(y.pop(0))
                    if x: merged.append(x.pop(0))
                out += merged
        return out

    slow_blocks = []

    def lsum(j, u):
        for qb in range(2):
            d = preg(j + 1, 0, qb)
            pr = preg(j, u, qb)
            c = '0' if u == 0 else f'v[{d}:{d+3}]'
            k(f'{MF} v[{d}:{d+3}], v[{ONES}:{ONES+3}], v[{pr}:{pr+3}], {c}')

    def check(j):
        sl = k.label('slow'); rt = k.label('ret')
        t0, t1 = preg(j + 1, 0, 0), preg(j + 1, 0, 1)
        k(f'v_add_f32 v4, v{t0}, v{t1}')
        k(f'v_cmp_nge_f32 vcc, s63, v4')
        k(f's_cbranch_vccnz {sl}')
        k(f'{rt}:')
        k(f'v_add_f32 v{LL}, v{LL}, v{t0}')
        k(f'v_add_f32 v{LL+1}, v{LL+1}, v{t1}')
        slow_blocks.append((sl, rt, j & 1))

    def iteration(j):
        dm = dma_k_parts((j + 4) % 4, ('g', j)) + dma_v_parts((j + 3) % 4, ('g', j))
        ops = pv_ops(j - 1) + qk_ops(j + 1)
        allops = ops + pv_ops(j)
        valu = sm_stream(j)
        nm = len(ops)
        per = len(valu) / (2 * SMEND)
        acc = 0.0
        vi = 0
        nrd = AH
        for i, (rd, mfs, tag) in enumerate(ops):
            if i < 8:
                want = 7 + i
            elif i < BAR:
                want = 16
            else:
                want = i + AH + 1
            if i == BAR:
                k('s_waitcnt lgkmcnt(0)')
                lg.q = []
                vm.wait(('g', j - 3))
                k('s_barrier')
            b = None
            for mf in mfs:
                acc += per
                n = min(int(acc + 1e-6), len(valu)) - vi
                for _ in range(n):
                    k(valu[vi]); vi += 1
                if b is None:
                    while nrd < want:
                        allops[nrd][0](); nrd += 1
                    b = use_frag(tag, allops[i + 1][2])
                k(mf(b))
            if dm and i >= BAR + 4 and (i - BAR) % 3 == 1:
                dm.pop(0)()
            if i == 17:
                assert vi >= len(valu) // 2
                lsum(j, 0)
            if i == SMEND:
                assert vi == len(valu)
                lsum(j, 1)
        assert not dm and nrd == nm + AH, (nrd, dm)
        while vi < len(valu):
            k(valu[vi]); vi += 1
        check(j)

    SMEND = 27
    st(1)
    vm.wait(('k', 0))
    k('s_barrier')
    ops = qk_ops(0) + pv_ops(-1)
    for i in range(AH):
        ops[i][0]()
    for i, (rd, mfs, tag) in enumerate(ops[:16]):
        ops[i + AH][0]()
        b = use_frag(tag)
        for mf in mfs:
            k(mf(b))
    st(2)
    if prio:
        pl = k.label('prio')
        k('s_cmp_lt_u32 s45, 4')
        k(f's_cbranch_scc1 {pl}')
        k('s_setprio 1')
        k(f'{pl}:')
    L = k.label('loop')
    k('s_mov_b32 s56, 8')
    vq0 = list(vm.q)
    lq0 = list(lg.q)
    f0 = fbn['r'] % NB
    k(f'{L}:')
    for j in range(0, 4):
        iteration(j)
    assert [(a, b - 4) for (a, b) in vm.q] == vq0, (vm.q, vq0)
    assert [(t[0], t[1] - 4) + t[2:] for t in lg.q] == lq0
    assert fbn['r'] % NB == f0
    k('s_sub_u32 s56, s56, 1')
    k('s_cmp_lg_u32 s56, 0')
    k(f's_cbranch_scc1 {L}')
    k.check_backedge(L)
    st(3)
    ops = pv_ops(3)
    for i, (rd, mfs, tag) in enumerate(ops):
        if i + AH < 16:
            ops[i + AH][0]()
        b = use_frag(tag)
        for mf in mfs:
            k(mf(b))
    for qb in range(2):
        l = LL + qb
        k(f'v_rcp_f32 v1, v{l}')
        k(f'v_fma_f32 v3, -v{l}, v1, 1.0')
        k(f'v_fma_f32 v{l}, v3, v1, v1')
    k('v_lshlrev_b32 v5, 4, v2')
    k('s_lshl_b32 s51, s46, 13')
    k('s_lshl_b32 s54, s43, 12')
    k('s_add_u32 s51, s51, s54')
    for qb in range(2):
        for t in range(4):
            tr = S + 4 * (4 * qb + t)
            for b in range(2):
                o = oreg(2 * t + b, qb)
                for i in range(4):
                    k(f'v_mul_f32 v{o+i}, v{o+i}, v{LL+qb}')
                k(f'v_cvt_pk_bf16_f32 v{tr+2*b}, v{o}, v{o+1}')
                k(f'v_cvt_pk_bf16_f32 v{tr+2*b+1}, v{o+2}, v{o+3}')
            k(f'buffer_store_dwordx4 v[{tr}:{tr+3}], v5, s[28:31], s51 offen offset:{1024*t} sc0 sc1')
        k('s_add_u32 s51, s51, 131072')
    k('s_waitcnt vmcnt(0)')
    if stamp:
        st(4)
        k('s_memrealtime s[82:83]')
        k('s_waitcnt lgkmcnt(0)')
        srd(k, 84, p['ws'], 'q')
        k('s_lshl_b32 s88, s2, 3')
        k('s_add_u32 s88, s88, s45')
        k('s_lshl_b32 s88, s88, 5')
        for i in range(1, 5):
            k(f's_sub_u32 s{70+2*i}, s{70+2*i}, s70')
        k('s_sub_u32 s82, s82, s80')
        for i, sreg_ in enumerate((72, 74, 76, 78, 82)):
            k(f'v_mov_b32 v1, s{sreg_}')
            k(f'v_mov_b32 v3, {4*i}')
            k(f'buffer_store_dword v1, v3, s[84:87], s88 offen')
    k(f'{done}:')
    k('s_endpgm')
    for (sl, rt, par) in slow_blocks:
        k(f'{sl}:')
        k.fence(16)
        for qb in range(2):
            regs = [sreg(par, kb, qb) + i for kb in range(4) for i in range(4)]
            k(f'v_max3_f32 v1, v{regs[0]}, v{regs[1]}, v{regs[2]}')
            for i in range(3, 15, 2):
                k(f'v_max3_f32 v1, v1, v{regs[i]}, v{regs[i+1]}')
            k(f'v_max_f32 v1, v1, v{regs[15]}')
            k('ds_swizzle_b32 v3, v1 offset:0x401F')
            k('s_waitcnt lgkmcnt(0)')
            k('v_max_f32 v1, v1, v3')
            k('v_mov_b32 v3, v1')
            k('v_permlane32_swap_b32 v3, v1')
            k('v_max_f32 v1, v1, v3')
            k('v_max_f32 v1, s61, v1')
            k(f'v_add_f32 v1, {f32bits(32.0)}, v1')
            for i in range(4):
                k(f'v_sub_f32 v{NM+4*qb+i}, v{NM+4*qb+i}, v1')
            for kb in range(4):
                for i in range(4):
                    r_ = sreg(par + 1, kb, qb) + i
                    k(f'v_sub_f32 v{r_}, v{r_}, v1')
            k('v_max_f32 v3, 0, v1')
            k('v_exp_f32 v3, -v3')
            k(f'v_mul_f32 v{LL+qb}, v{LL+qb}, v3')
            for Db in range(8):
                for i in range(4):
                    k(f'v_mul_f32 v{oreg(Db, qb)+i}, v{oreg(Db, qb)+i}, v3')
            LSq = preg(par + 1, 0, qb)
            k(f'v_mov_b32 v{LSq}, 0')
            for kb in range(4):
                for hh in range(2):
                    a = sreg(par, kb, qb) + 2 * hh
                    pd = preg(par, kb >> 1, qb) + 2 * (kb & 1) + hh
                    k(f'v_sub_f32 v4, v{a}, v1')
                    k(f'v_sub_f32 v5, v{a+1}, v1')
                    k('v_exp_f32 v4, v4')
                    k('v_exp_f32 v5, v5')
                    k(f'v_add_f32 v{LSq}, v{LSq}, v4')
                    k(f'v_add_f32 v{LSq}, v{LSq}, v5')
                    k(f'v_cvt_pk_bf16_f32 v{pd}, v4, v5')
            k(f'ds_swizzle_b32 v3, v{LSq} offset:0x401F')
            k('s_waitcnt lgkmcnt(0)')
            k(f'v_add_f32 v{LSq}, v{LSq}, v3')
            k(f'v_mov_b32 v3, v{LSq}')
            k(f'v_permlane32_swap_b32 v3, v{LSq}')
            k(f'v_add_f32 v{LSq}, v{LSq}, v3')
        k(f's_mov_b32 s61, {f32bits(-32.0)}')
        k(f's_mov_b32 s63, {f32bits(2.0**80)}')
        k.fence(4)
        k(f's_branch {rt}')
    return k, (256, 512, 147456)
```

```python
from common import *
from attn import Cnt

MF = 'v_mfma_f32_16x16x32_bf16'


def k_g5f():
    k = Kernel('g5_kernel')
    done = k.label('done')
    k('s_cmp_ge_u32 s2, 256')
    k(f's_cbranch_scc1 {done}')
    p = load_ptrs(k, ['ws', 'out'], 4)
    k('s_and_b32 s40, s2, 7')
    k('s_lshr_b32 s41, s2, 3')
    k('s_lshl_b32 s42, s40, 3')
    k('s_and_b32 s43, s41, 7')
    k('s_add_u32 s42, s42, s43')
    k('s_lshr_b32 s43, s41, 3')
    k('v_lshrrev_b32 v1, 6, v0')
    k('v_and_b32 v2, 63, v0')
    k('v_readfirstlane_b32 s45, v1')
    k('v_lshlrev_b32 v8, 4, v2')
    k('v_add_u32 v9, 73728, v8')
    k('v_add_u32 v10, 4096, v8')
    k('v_add_u32 v11, 8192, v8')
    k(f's_mul_i32 s51, s42, {2*73728}')
    k('s_lshl_b32 s53, s45, 10')
    k('s_add_u32 s51, s51, s53')
    k(f's_mul_i32 s52, s45, {36*1024}')
    k('s_mul_i32 s53, s43, 9216')
    k('s_add_u32 s52, s52, s53')
    k('s_waitcnt lgkmcnt(0)')
    srd(k, 12, p['ws'], 'y')
    srd(k, 16, p['ws'], 'woutf')
    vm = Cnt(k, 'vmcnt', 63)
    BUF = 12
    NBUF = 3

    def parts(s):
        b = BUF + 44 * (s % NBUF)
        out = []
        for mt in range(2):
            def f(mt=mt):
                k(f'buffer_load_dwordx4 v[{b+4*mt}:{b+4*mt+3}], v{8+mt}, s[12:15], s51 offen')
                if mt == 1:
                    k('s_add_u32 s51, s51, 8192')
                vm.add((s, 'a', mt))
            out.append(f)
        for nt in range(9):
            def f(nt=nt):
                r = b + 8 + 4 * nt
                vo = (8, 10, 11)[nt // 4]
                k(f'buffer_load_dwordx4 v[{r}:{r+3}], v{vo}, s[16:19], s52 offen offset:{1024*(nt%4)}')
                if nt == 8:
                    k(f's_add_u32 s52, s52, {8*36*1024}')
                vm.add((s, 'b', nt))
            out.append(f)
        return out
    for s in range(2):
        for f in parts(s):
            f()
    for i in range(72):
        k(f'v_accvgpr_write_b32 a{i}, 0')
    srd(k, 20, p['ws'], 'x1')
    srd(k, 24, p['ws'], 'mod')
    srd(k, 28, p['out'], 'out')
    for s in range(9):
        b = BUF + 44 * (s % NBUF)
        pend = parts(s + 2) if s + 2 < 9 else []
        for nt in range(9):
            vm.wait((s, 'b', nt))
            for mt in range(2):
                d = (mt * 9 + nt) * 4
                k(f'{MF} a[{d}:{d+3}], v[{b+8+4*nt}:{b+11+4*nt}], v[{b+4*mt}:{b+4*mt+3}], a[{d}:{d+3}]')
                if pend:
                    pend.pop(0)()
    k.fence(8)
    k('s_mul_i32 s53, s45, 18432')
    k('v_add_u32 v1, s53, v8')
    for t in range(18):
        r = BUF + 4 * t
        for i in range(4):
            k(f'v_accvgpr_read_b32 v{r+i}, a{4*t+i}')
        k(f'ds_write_b128 v1, v[{r}:{r+3}] offset:{1024*t}')
    k('v_and_b32 v3, 15, v2')
    k('v_lshrrev_b32 v4, 4, v2')
    k('s_lshl_b32 s53, s45, 10')
    k('v_add_u32 v1, s53, v8')
    k('v_add_u32 v5, 73728, v1')
    k('s_waitcnt lgkmcnt(0)')
    k('s_barrier')
    for j in range(3):
        if j == 2:
            k('s_cmp_ge_u32 s45, 2')
            k(f's_cbranch_scc1 {done}')
        k(f's_add_u32 s54, s45, {8*j}')
        k('s_cmp_ge_u32 s54, 9')
        k('s_cselect_b32 s55, 1, 0')
        k('s_mul_i32 s56, s55, 9')
        k('s_sub_u32 s56, s54, s56')
        k('s_lshl_b32 s57, s42, 5')
        k('s_lshl_b32 s55, s55, 4')
        k('s_add_u32 s57, s57, s55')
        k('s_mul_i32 s58, s43, 144')
        k('s_lshl_b32 s56, s56, 4')
        k('s_add_u32 s58, s58, s56')
        k('v_add_u32 v6, s57, v3')
        k('v_mul_u32_u24 v6, 1152, v6')
        k('v_lshl_add_u32 v7, v4, 2, s58')
        k('v_lshl_add_u32 v6, v7, 1, v6')
        k('v_lshlrev_b32 v7, 2, v7')
        E = BUF + 40 * j
        k('s_lshr_b32 s59, s57, 4')
        k('s_mul_i32 s59, s59, 18432')
        k('s_lshl_b32 s60, s58, 5')
        k('s_add_u32 s59, s59, s60')
        k('v_lshlrev_b32 v9, 3, v2')
        k(f'buffer_load_dwordx2 v[{E+32}:{E+33}], v9, s[20:23], s59 offen')
        k(f's_mov_b32 s59, {5*2304}')
        k(f'buffer_load_dwordx4 v[{E+36}:{E+39}], v7, s[24:27], s59 offen')
        for w in range(8):
            a = 1 if w < 4 else 5
            k(f'ds_read_b128 v[{E+4*w}:{E+4*w+3}], v{a} offset:{18432*(w%4)}')
        k('v_add_u32 v1, 8192, v1')
        k('v_add_u32 v5, 8192, v5')
        k('s_waitcnt lgkmcnt(0)')
        for st in (4, 2, 1):
            for w in range(st):
                for i in range(4):
                    k(f'v_add_f32 v{E+4*w+i}, v{E+4*w+i}, v{E+4*(w+st)+i}')
        k('s_waitcnt vmcnt(0)')
        k(f'v_lshlrev_b32 v{E+4}, 16, v{E+32}')
        k(f'v_and_b32 v{E+5}, 0xffff0000, v{E+32}')
        k(f'v_lshlrev_b32 v{E+6}, 16, v{E+33}')
        k(f'v_and_b32 v{E+7}, 0xffff0000, v{E+33}')
        for i in range(4):
            k(f'v_fma_f32 v{E+i}, v{E+36+i}, v{E+i}, v{E+4+i}')
        k(f'v_cvt_pk_bf16_f32 v{E}, v{E}, v{E+1}')
        k(f'v_cvt_pk_bf16_f32 v{E+1}, v{E+2}, v{E+3}')
        k(f'buffer_store_dwordx2 v[{E}:{E+1}], v6, s[28:31], 0 offen')
    k(f'{done}:')
    k('s_endpgm')
    k.nacc = 72
    return k, (256, 512, 147456)
```

```python
from common import *
from attn import Cnt
import math

LOG2E = 1.4426950408889634
MF = 'v_mfma_f32_16x16x32_bf16'
SC = 'sc0 sc1'


def k_gemm3(name, a_src, lda, b_src, ntg, nsteps, nsub, ntn, nsplit, epi, stamp=False, R=4):
    assert 16 * ntn * nsplit == 256
    k = Kernel(name)
    MT = 2 * nsub
    NT = 9
    NDMA = 3 * nsub
    STAGE = 18432 * nsub
    done = k.label('done')

    def stp(i):
        if stamp:
            k(f's_memtime s[{70+2*i}:{71+2*i}]')
    stp(0)
    if stamp:
        k('s_memrealtime s[80:81]')
    k('s_cmp_ge_u32 s2, 256')
    k(f's_cbranch_scc1 {done}')
    names = ['ws'] + (['b_sp'] if epi == 'gate' else [])
    p = load_ptrs(k, names, 4)
    k('s_and_b32 s40, s2, 7')
    k('s_lshr_b32 s41, s2, 3')
    if nsplit == 1:
        k('s_lshr_b32 s42, s40, 1')
        k('s_lshl_b32 s42, s42, 2')
        k('s_and_b32 s43, s41, 3')
        k('s_add_u32 s42, s42, s43')
        k('s_and_b32 s43, s40, 1')
        k('s_lshl_b32 s43, s43, 3')
        k('s_lshr_b32 s44, s41, 2')
        k('s_add_u32 s43, s43, s44')
        k('s_mov_b32 s44, 0')
    else:
        k('s_and_b32 s44, s40, 3')
        k('s_lshr_b32 s42, s40, 2')
        k('s_lshl_b32 s42, s42, 3')
        k('s_and_b32 s43, s41, 7')
        k('s_add_u32 s42, s42, s43')
        k('s_lshr_b32 s43, s41, 3')
    k('v_lshrrev_b32 v1, 6, v0')
    k('v_and_b32 v2, 63, v0')
    k('v_readfirstlane_b32 s45, v1')
    k('v_lshlrev_b32 v8, 4, v2')
    k('s_lshr_b32 s60, s45, 2')
    k('s_and_b32 s61, s45, 3')
    if nsub == 1:
        k('s_lshl_b32 s46, s61, 5')
        k('s_mov_b32 s47, 0')
    else:
        k('s_lshr_b32 s46, s61, 1')
        k('s_lshl_b32 s46, s46, 6')
        k('s_and_b32 s47, s61, 1')
    k('s_lshl_b32 s48, s42, 7')
    k('s_add_u32 s48, s48, s46')
    k(f's_mul_i32 s49, s43, {144*nsub}')
    LN = 8
    AOFF = 9
    TRA = AOFF + MT
    NW = (R * STAGE + 65535) // 65536
    base = (TRA + NW + 3) // 4 * 4
    NB = 6 if nsub == 1 else 4
    BF = base
    AF = BF + 4 * NB
    k('s_lshr_b32 s50, s48, 4')
    k(f's_mul_i32 s50, s50, {lda}')
    k(f'v_add_u32 v{AOFF}, s50, v{LN}')
    for mt in range(1, MT):
        k(f'v_add_u32 v{AOFF+mt}, {lda*mt}, v{AOFF}')
    k(f's_mul_i32 s51, s44, {nsteps*2048}')
    k('s_lshl_b32 s53, s60, 10')
    k('s_add_u32 s51, s51, s53')
    k(f's_mul_i32 s52, s44, {2*nsteps}')
    k('s_add_u32 s52, s52, s60')
    k(f's_mul_i32 s52, s52, {ntg*1024}')
    k(f's_mul_i32 s53, s43, {9*nsub*1024}')
    k('s_add_u32 s52, s52, s53')
    k(f's_mul_i32 s53, s61, {NDMA*768}')
    k('s_add_u32 s52, s52, s53')
    k(f's_mul_i32 s55, s60, {9216*nsub}')
    k('s_add_u32 s55, s55, s53')
    k(f's_mul_i32 s53, s60, {9216*nsub}')
    k('s_mul_i32 s54, s47, 9216')
    k('s_add_u32 s53, s53, s54')
    k(f'v_add_u32 v{TRA}, s53, v{LN}')
    for w in range(1, NW):
        k(f'v_add_u32 v{TRA+w}, {65536*w}, v{TRA}')
    k('s_mov_b32 s62, -1')
    k('s_mov_b32 s63, 0xffff')
    k('s_waitcnt lgkmcnt(0)')
    srd(k, 12, p['ws'], a_src)
    srd(k, 16, p['ws'], b_src)
    vm = Cnt(k, 'vmcnt', 63)
    lg = Cnt(k, 'lgkmcnt', 15)

    def group_parts(st, tag):
        out = []
        for mt in range(MT):
            def f(mt=mt):
                r = AF + (st * MT + mt) * 4
                k(f'buffer_load_dwordx4 v[{r}:{r+3}], v{AOFF+mt}, s[12:15], s51 offen')
                if mt == MT - 1:
                    k('s_add_u32 s51, s51, 2048')
                vm.add(tag, 1)
            out.append(f)
        for j in range(NDMA):
            def f(j=j):
                if j % 3 == 0:
                    k(f's_add_u32 m0, s55, {st*STAGE + 2304*(j//3)}')
                    if j:
                        k('s_add_u32 s52, s52, 2304')
                k('s_mov_b64 exec, s[62:63]')
                k(f'buffer_load_dwordx4 v{LN}, s[16:19], s52 offen offset:{768*(j%3)} lds')
                k('s_mov_b64 exec, -1')
                if j == NDMA - 1:
                    k(f's_add_u32 s52, s52, {2*ntg*1024 - 2304*(nsub-1)}')
                vm.add(tag, 1)
            out.append(f)
        return out

    for st_ in range(min(R - 1, nsteps)):
        for f in group_parts(st_, ('g', st_)):
            f()
    for i in range(MT * NT * 4):
        k(f'v_accvgpr_write_b32 a{i}, 0')
    state = {'r': 0, 'u': 0}

    def read_frag(st, nt, tag):
        b = BF + 4 * (state['r'] % NB)
        state['r'] += 1
        off = st * STAGE + nt * 1024
        k(f'ds_read_b128 v[{b}:{b+3}], v{TRA + off // 65536} offset:{off % 65536}')
        lg.add(tag, 1)

    AHEAD = NB - 1
    BARF = 9 - AHEAD - 1

    def step(s, issue, last):
        st = s % R
        pend = []
        for f in range(9):
            if f == BARF and not last:
                vm.wait(('g', s + 1))
                k('s_barrier')
                if issue:
                    pend = group_parts((st + R - 1) % R, ('g', s + R - 1))
            nf = f + AHEAD
            if nf < 9:
                read_frag(st, nf, ('f', s, nf))
            elif not last:
                read_frag((st + 1) % R, nf - 9, ('f', s + 1, nf - 9))
            lg.wait(('f', s, f))
            b = BF + 4 * (state['u'] % NB)
            state['u'] += 1
            for mt in range(MT):
                a = AF + (st * MT + mt) * 4
                d = (mt * NT + f) * 4
                k(f'{MF} a[{d}:{d+3}], v[{b}:{b+3}], v[{a}:{a+3}], a[{d}:{d+3}]')
                if pend and (mt % 2 == 1):
                    pend.pop(0)()
        while pend:
            pend.pop(0)()

    vm.wait(('g', 0))
    k('s_barrier')
    stp(1)
    for f in range(AHEAD):
        read_frag(0, f, ('f', 0, f))
    if nsteps % R == 0 and nsteps >= 2 * R:
        nloop = nsteps // R - 1
        k(f's_mov_b32 s56, {nloop}')
        L = k.label('loop')
        vq0 = list(vm.q); lq0 = list(lg.q)
        k(f'{L}:')
        for u in range(R):
            step(u, True, False)
        assert [(a, b - R) for (a, b) in vm.q] == vq0
        assert [(a, b - R, c) for (a, b, c) in lg.q] == lq0
        k('s_sub_u32 s56, s56, 1')
        k('s_cmp_lg_u32 s56, 0')
        k(f's_cbranch_scc1 {L}')
        k.check_backedge(L)
        first = nsteps - R
        sh = first - R
        vm.q = [(a, b + sh) for (a, b) in vm.q]
        lg.q = [(a, b + sh, c) for (a, b, c) in lg.q]
    else:
        first = 0
    H = MT // 2
    k(f's_mul_i32 s64, s60, {16*H}')
    k('s_add_u32 s48, s48, s64')
    k('v_and_b32 v3, 15, v2')
    k('v_lshrrev_b32 v5, 4, v2')
    k('v_add_u32 v3, s48, v3')
    k('s_mul_i32 s53, s47, 144')
    k('s_add_u32 s53, s53, s49')
    k('v_lshl_add_u32 v5, v5, 2, s53')
    EX = AF + R * MT * 4
    if epi == 'gate':
        srd(k, 20, p['ws'], 'y')
        srd(k, 24, p['ws'], 'z')
        srd(k, 28, p['b_sp'], 'b_sp')
        k('s_lshr_b32 s65, s48, 5')
        k(f's_mul_i32 s65, s65, {288*1024}')
        k('s_lshl_b32 s64, s53, 6')
        k('s_add_u32 s65, s65, s64')
        k('s_lshr_b32 s64, s48, 1')
        k('s_and_b32 s64, s64, 8')
        k('s_add_u32 s65, s65, s64')
        k('s_add_u32 s66, s65, 4096')
        k('s_add_u32 s67, s65, 8192')
        k('v_lshlrev_b32 v7, 1, v3')
    for s in range(first, nsteps):
        step(s, s + R - 1 <= nsteps - 1, s == nsteps - 1)
        if epi == 'gate' and s == nsteps - 2:
            k(f'buffer_load_ushort v{EX+18}, v7, s[28:31], 0 offen')
            for nt in range(NT):
                k(f'buffer_load_dwordx2 v[{EX+2*nt}:{EX+2*nt+1}], v{LN}, s[24:27], s{65+nt//4} offen offset:{1024*(nt%4)}')

    stp(2)
    k('s_barrier')
    k(f's_mul_i32 s64, s45, {H*9*1024}')
    k(f'v_add_u32 v1, s64, v{LN}')
    k('s_xor_b32 s64, s45, 4')
    k(f's_mul_i32 s64, s64, {H*9*1024}')
    k(f'v_add_u32 v4, s64, v{LN}')
    T = BF
    NTMP = (AF + R * MT * 4 - BF) // 4
    lab1 = k.label('hi'); lab2 = k.label('end')
    k('s_cmp_eq_u32 s60, 1')
    k(f's_cbranch_scc1 {lab1}')
    for grp in range(2):
        k.fence(8)
        send0 = H if grp == 0 else 0
        keep0 = 0 if grp == 0 else H
        n = 0
        for mt in range(H):
            for nt in range(NT):
                d = ((send0 + mt) * NT + nt) * 4
                t = T + 4 * (n % NTMP); n += 1
                for r in range(4):
                    k(f'v_accvgpr_read_b32 v{t+r}, a{d+r}')
                k(f'ds_write_b128 v1, v[{t}:{t+3}] offset:{(mt*NT+nt)*1024}')
        k('s_waitcnt lgkmcnt(0)')
        k('s_barrier')
        if grp == 0:
            stp(3)
        PR = T
        W = T + 36
        if epi in ('part2', 'part5'):
            srd(k, 20, p['ws'], 'p2')
            k(f's_mul_i32 s57, s44, {128*4*5120}')
            k('s_lshr_b32 s64, s48, 4')
            k('s_lshl_b32 s64, s64, 2')
            k('s_add_u32 s64, s64, s43')
            k('s_mul_i32 s64, s64, 5120')
            k('s_add_u32 s57, s57, s64')
        elif epi == 'gelu':
            srd(k, 20, p['ws'], 'z')
            k('v_mul_u32_u24 v6, 9216, v3')
            k('v_lshl_add_u32 v6, v5, 1, v6')
            k('s_mov_b32 s57, 0')
            c0 = -2.0 * LOG2E * math.sqrt(2.0 / math.pi)
            k(f's_mov_b32 s58, {f32bits(c0)}')
            k(f's_mov_b32 s59, {f32bits(c0*0.044715)}')
            k('v_mov_b32 v7, s58')
        else:
            k('s_lshr_b32 s57, s48, 4')
            k(f's_mul_i32 s57, s57, {72*1024}')
            k('s_lshr_b32 s58, s53, 4')
            k('s_waitcnt vmcnt(0)')
            k(f'v_lshlrev_b32 v{EX+18}, 16, v{EX+18}')
        if epi == 'gelu':
            k('s_lshr_b32 s57, s48, 5')
            k(f's_mul_i32 s57, s57, {288*1024}')
            k('s_lshl_b32 s64, s53, 6')
            k('s_add_u32 s57, s57, s64')
            for half in range(2):
                nts = list(range(0, 5)) if half == 0 else list(range(5, 9))
                for i, nt in enumerate(nts):
                    for mt in range(2):
                        r_ = PR + 8 * i + 4 * mt
                        k(f'ds_read_b128 v[{r_}:{r_+3}], v4 offset:{(mt*NT+nt)*1024}')
                for i, nt in enumerate(nts):
                    w = T + 40 + 8 * (i % 2)
                    t = PR + 8 * i
                    for mt in range(2):
                        d = ((keep0 + mt) * NT + nt) * 4
                        for r in range(4):
                            k(f'v_accvgpr_read_b32 v{w+4*mt+r}, a{d+r}')
                    k(f's_waitcnt lgkmcnt({2*(len(nts)-1-i)})')
                    for r in range(8):
                        k(f'v_add_f32 v{t+r}, v{t+r}, v{w+r}')
                    for r in range(8):
                        k(f'v_mul_f32 v{w+r}, v{t+r}, v{t+r}')
                    for r in range(8):
                        k(f'v_fma_f32 v{w+r}, v{w+r}, s59, v7')
                    for r in range(8):
                        k(f'v_mul_f32 v{w+r}, v{w+r}, v{t+r}')
                    for r in range(8):
                        k(f'v_exp_f32 v{w+r}, v{w+r}')
                    for r in range(8):
                        k(f'v_add_f32 v{w+r}, 1.0, v{w+r}')
                    for r in range(8):
                        k(f'v_rcp_f32 v{w+r}, v{w+r}')
                    for r in range(8):
                        k(f'v_mul_f32 v{t+r}, v{t+r}, v{w+r}')
                    for r in range(4):
                        k(f'v_cvt_pk_bf16_f32 v{t+r}, v{t+2*r}, v{t+2*r+1}')
                    if nt == 4:
                        k('s_add_u32 s57, s57, 4096')
                    if nt == 8:
                        k('s_add_u32 s57, s57, 4096')
                    k(f'buffer_store_dwordx4 v[{t}:{t+3}], v{LN}, s[20:23], s57 offen offset:{1024*(nt%4)} {SC}')
        for mt in range(H if epi != 'gelu' else 0):
            for nt in range(NT):
                k(f'ds_read_b128 v[{PR+4*nt}:{PR+4*nt+3}], v4 offset:{(mt*NT+nt)*1024}')
            for nt in range(NT):
                d = ((keep0 + mt) * NT + nt) * 4
                t = PR + 4 * nt
                w = W + 8 * (nt % 2)
                for r in range(4):
                    k(f'v_accvgpr_read_b32 v{w+r}, a{d+r}')
                k(f's_waitcnt lgkmcnt({8-nt})')
                for r in range(4):
                    k(f'v_add_f32 v{t+r}, v{t+r}, v{w+r}')
                if epi in ('part2', 'part5'):
                    q_ = PR + 8 * (nt // 2) + 2 * (nt % 2)
                    k(f'v_cvt_pk_bf16_f32 v{q_}, v{t}, v{t+1}')
                    k(f'v_cvt_pk_bf16_f32 v{q_+1}, v{t+2}, v{t+3}')
                    if nt % 2 == 1:
                        k(f'buffer_store_dwordx4 v[{q_-2}:{q_+1}], v{LN}, s[20:23], s57 offen offset:{1024*(nt//2)} {SC}')
                    elif nt == 8:
                        k('s_add_u32 s57, s57, 4096')
                        k(f'buffer_store_dwordx2 v[{q_}:{q_+1}], v{LN}, s[20:23], s57 offen {SC}')
                elif epi == 'gelu':
                    rbf2(k, t, t + 1, t, t + 1, w)
                    rbf2(k, t + 2, t + 3, t + 2, t + 3, w + 1)
                    for r in range(4):
                        k(f'v_mul_f32 v{w+r}, v{t+r}, v{t+r}')
                    for r in range(4):
                        k(f'v_fma_f32 v{w+r}, v{w+r}, s59, v7')
                    for r in range(4):
                        k(f'v_mul_f32 v{w+r}, v{w+r}, v{t+r}')
                    for r in range(4):
                        k(f'v_exp_f32 v{w+r}, v{w+r}')
                    for r in range(4):
                        k(f'v_add_f32 v{w+r}, 1.0, v{w+r}')
                    for r in range(4):
                        k(f'v_rcp_f32 v{w+r}, v{w+r}')
                    for r in range(4):
                        k(f'v_mul_f32 v{t+r}, v{t+r}, v{w+r}')
                    k(f'v_cvt_pk_bf16_f32 v{t}, v{t}, v{t+1}')
                    k(f'v_cvt_pk_bf16_f32 v{t+1}, v{t+2}, v{t+3}')
                    k(f'buffer_store_dwordx2 v[{t}:{t+1}], v6, s[20:23], s57 offen offset:{32*nt} {SC}')
                else:
                    z = EX + 2 * nt
                    for r in range(4):
                        k(f'v_add_f32 v{t+r}, v{t+r}, v{EX+18}')
                    k(f'v_lshlrev_b32 v{w}, 16, v{z}')
                    k(f'v_and_b32 v{w+1}, 0xffff0000, v{z}')
                    k(f'v_lshlrev_b32 v{w+2}, 16, v{z+1}')
                    k(f'v_and_b32 v{w+3}, 0xffff0000, v{z+1}')
                    for r in range(4):
                        k(f'v_mul_f32 v{t+r}, v{t+r}, v{w+r}')
                    k(f'v_cvt_pk_bf16_f32 v{t}, v{t}, v{t+1}')
                    k(f'v_cvt_pk_bf16_f32 v{t+1}, v{t+2}, v{t+3}')
                    k(f's_add_u32 s59, s58, {nt}')
                    k('s_lshr_b32 s64, s59, 1')
                    k('s_lshl_b32 s64, s64, 10')
                    k('s_and_b32 s59, s59, 1')
                    k('s_lshl_b32 s59, s59, 3')
                    k('s_add_u32 s59, s59, s64')
                    k('s_add_u32 s59, s59, s57')
                    k(f'buffer_store_dwordx2 v[{t}:{t+1}], v{LN}, s[20:23], s59 offen {SC}')
            if mt < H - 1:
                k(f's_add_u32 s57, s57, {16*(2304 if epi.startswith("part") else 9216)}')
        if grp == 0:
            k(f's_branch {lab2}')
            k(f'{lab1}:')
    k(f'{lab2}:')
    if stamp:
        k('s_waitcnt vmcnt(0)')
        stp(4)
        k('s_memrealtime s[82:83]')
        k('s_waitcnt lgkmcnt(0)')
        srd(k, 84, p['ws'], 'q')
        k('s_lshl_b32 s88, s2, 3')
        k('s_add_u32 s88, s88, s45')
        k('s_lshl_b32 s88, s88, 5')
        for i in range(1, 5):
            k(f's_sub_u32 s{70+2*i}, s{70+2*i}, s70')
        k('s_sub_u32 s82, s82, s80')
        for i, sreg_ in enumerate((72, 74, 76, 78, 82)):
            k(f'v_mov_b32 v1, s{sreg_}')
            k(f'v_mov_b32 v3, {4*i}')
            k(f'buffer_store_dword v1, v3, s[84:87], s88 offen')
    k(f'{done}:')
    k('s_endpgm')
    k.nacc = MT * NT * 4
    return k, (256, 512, max(R * STAGE, 8 * H * 9216))
```

```python
from common import *
from prep import *


def k_ln2f(preps=()):
    k = Kernel('ln2_kernel')
    done = k.label('done'); pp = k.label('prep')
    k('s_cmp_ge_u32 s2, 128')
    k(f's_cbranch_scc1 {pp if preps else done}')
    p = load_ptrs(k, ['x', 'ws'], 4)
    k('v_lshrrev_b32 v1, 6, v0')
    k('v_and_b32 v2, 63, v0')
    k('v_readfirstlane_b32 s3, v1')
    k('v_and_b32 v4, 15, v2')
    k('v_lshrrev_b32 v5, 4, v2')
    k('v_lshlrev_b32 v3, 4, v2')
    k('v_lshlrev_b32 v15, 3, v2')
    k('s_lshl_b32 s32, s2, 2')
    k('s_add_u32 s32, s32, s3')
    k('s_mul_i32 s33, s32, 5120')
    k('s_lshl_b32 s34, s2, 4')
    k('v_add_u32 v6, s34, v4')
    k('v_mul_u32_u24 v6, 1152, v6')
    k('v_lshl_add_u32 v6, v5, 3, v6')
    k('s_mul_i32 s34, s3, 288')
    k('v_lshlrev_b32 v7, 4, v5')
    k('s_mul_i32 s35, s3, 576')
    k('s_waitcnt lgkmcnt(0)')
    srd(k, 12, p['x'], 'x')
    srd(k, 16, p['ws'], 'mod')
    srd(k, 20, p['ws'], 'h2')
    srd(k, 24, p['ws'], 'p2')
    srd(k, 28, p['ws'], 'x1')
    X = 16
    RP = 52
    V = 92
    XR = 52

    def load_part(sp, base):
        k(f's_add_u32 s36, s33, {sp*128*4*5120}')
        k('s_add_u32 s37, s36, 4096')
        for i in range(4):
            k(f'buffer_load_dwordx4 v[{base+4*i}:{base+4*i+3}], v3, s[24:27], s36 offen offset:{1024*i}')
        k(f'buffer_load_dwordx2 v[{base+16}:{base+17}], v3, s[24:27], s37 offen')

    def acc_part(base, first):
        for i in range(18):
            if first:
                k(f'v_lshlrev_b32 v{X+2*i}, 16, v{base+i}')
                k(f'v_and_b32 v{X+2*i+1}, 0xffff0000, v{base+i}')
            else:
                k(f'v_lshlrev_b32 v8, 16, v{base+i}')
                k(f'v_and_b32 v9, 0xffff0000, v{base+i}')
                k(f'v_add_f32 v{X+2*i}, v{X+2*i}, v8')
                k(f'v_add_f32 v{X+2*i+1}, v{X+2*i+1}, v9')

    def load_vec(j):
        k(f's_add_u32 s36, s35, {j*2304}')
        for nt in range(9):
            k(f'buffer_load_dwordx4 v[{V+4*nt}:{V+4*nt+3}], v7, s[16:19], s36 offen offset:{64*nt}')
    load_part(0, RP); load_part(1, RP + 20)
    load_vec(2)
    k('s_waitcnt vmcnt(14)')
    acc_part(RP, True)
    load_part(2, RP)
    k('s_waitcnt vmcnt(14)')
    acc_part(RP + 20, False)
    load_part(3, RP + 20)
    k('s_waitcnt vmcnt(5)')
    acc_part(RP, False)
    for nt in range(9):
        k(f'buffer_load_dwordx2 v[{XR+2*nt}:{XR+2*nt+1}], v6, s[12:15], s34 offen offset:{32*nt}')
    k('s_waitcnt vmcnt(9)')
    acc_part(RP + 20, False)
    k('s_waitcnt vmcnt(0)')
    k('s_mul_i32 s36, s32, 4608')
    for i in range(18):
        k(f'v_lshlrev_b32 v8, 16, v{XR+i}')
        k(f'v_and_b32 v9, 0xffff0000, v{XR+i}')
        k(f'v_fma_f32 v{X+2*i}, v{X+2*i}, v{V+2*i}, v8')
        k(f'v_fma_f32 v{X+2*i+1}, v{X+2*i+1}, v{V+2*i+1}, v9')
        k(f'v_cvt_pk_bf16_f32 v{XR+i}, v{X+2*i}, v{X+2*i+1}')
        k(f'v_lshlrev_b32 v{X+2*i}, 16, v{XR+i}')
        k(f'v_and_b32 v{X+2*i+1}, 0xffff0000, v{XR+i}')
        if i % 2 == 1:
            nt = i // 2
            if nt == 8:
                k('s_add_u32 s36, s36, 4096')
            k(f'buffer_store_dwordx2 v[{XR+i-1}:{XR+i}], v15, s[28:31], s36 offen offset:{512*(nt%8)}')
    load_vec(4)

    def wg_reduce(r_, off):
        k(f'ds_swizzle_b32 v8, v{r_} offset:0x401F')
        k('s_waitcnt lgkmcnt(0)')
        k(f'v_add_f32 v{r_}, v{r_}, v8')
        k(f'v_mov_b32 v8, v{r_}')
        k(f'v_permlane32_swap_b32 v8, v{r_}')
        k(f'v_add_f32 v{r_}, v{r_}, v8')
        k('v_lshlrev_b32 v8, 4, v4')
        k('s_lshl_b32 s37, s3, 2')
        k('v_add_u32 v9, s37, v8')
        k(f'ds_write_b32 v9, v{r_} offset:{off}')
        k('s_waitcnt lgkmcnt(0)')
        k('s_barrier')
        k(f'ds_read_b128 v[72:75], v8 offset:{off}')
        k('s_waitcnt lgkmcnt(0)')
        k('v_add_f32 v72, v72, v73')
        k('v_add_f32 v74, v74, v75')
        k(f'v_add_f32 v{r_}, v72, v74')
    k(f'v_add_f32 v10, v{X}, v{X+1}')
    k(f'v_add_f32 v11, v{X+2}, v{X+3}')
    for i in range(4, 36, 2):
        k(f'v_add_f32 v10, v10, v{X+i}')
        k(f'v_add_f32 v11, v11, v{X+i+1}')
    k('v_add_f32 v10, v10, v11')
    wg_reduce(10, 0)
    k(f'v_mul_f32 v10, {f32bits(1.0/576)}, v10')
    for i in range(36):
        k(f'v_sub_f32 v{X+i}, v{X+i}, v10')
    k(f'v_mul_f32 v11, v{X}, v{X}')
    k(f'v_mul_f32 v12, v{X+1}, v{X+1}')
    for i in range(2, 36, 2):
        k(f'v_fmac_f32 v11, v{X+i}, v{X+i}')
        k(f'v_fmac_f32 v12, v{X+i+1}, v{X+i+1}')
    k('v_add_f32 v11, v11, v12')
    wg_reduce(11, 256)
    k(f'v_mov_b32 v12, {f32bits(1e-5)}')
    k(f'v_fmac_f32 v12, {f32bits(1.0/576)}, v11')
    k('v_rsq_f32 v13, v12')
    k('v_mul_f32 v8, v12, v13')
    k('v_fma_f32 v8, -v8, v13, 1.0')
    k('v_mul_f32 v9, 0.5, v13')
    k('v_fmac_f32 v13, v8, v9')
    k('s_waitcnt vmcnt(0)')
    for i in range(36):
        k(f'v_fma_f32 v{V+i}, v{V+i}, v13, v13')
        k(f'v_mul_f32 v{X+i}, v{X+i}, v{V+i}')
    load_vec(3)
    k('s_mul_i32 s36, s2, 18432')
    k('s_mul_i32 s37, s3, 9')
    k('s_waitcnt vmcnt(0)')
    for nt in range(9):
        x = X + 4 * nt
        for c in range(4):
            k(f'v_add_f32 v{x+c}, v{x+c}, v{V+4*nt+c}')
        k(f'v_cvt_pk_bf16_f32 v{x}, v{x}, v{x+1}')
        k(f'v_cvt_pk_bf16_f32 v{x+1}, v{x+2}, v{x+3}')
        k(f's_add_u32 s38, s37, {nt}')
        k('s_lshr_b32 s39, s38, 1')
        k('s_lshl_b32 s39, s39, 10')
        k('s_and_b32 s38, s38, 1')
        k('s_lshl_b32 s38, s38, 3')
        k('s_add_u32 s38, s38, s39')
        k('s_add_u32 s38, s38, s36')
        k(f'buffer_store_dwordx2 v[{x}:{x+1}], v3, s[20:23], s38 offen')
    k(f'{done}:')
    k('s_endpgm')
    nwg = 0
    if preps:
        k(f'{pp}:')
        nwg = emit_prep_section(k, 128, list(preps), 4, done)
    return k, (128 + nwg, 256, 4 * 9216 if preps else 1024)
```

```python
from common import *
from prep import *
from small import ln_core, LOG2E


def dbg_srd(k, sd, sptr):
    k(f's_mov_b32 s{sd}, s{sptr}')
    k(f's_mov_b32 s{sd+1}, s{sptr+1}')
    k(f's_mov_b32 s{sd+2}, 256')
    k(f's_mov_b32 s{sd+3}, 0x00020000')


def poll(k, srd_, voff, target, tmp):
    L = k.label('poll')
    k(f'{L}:')
    k(f'buffer_load_dword v{tmp}, v{voff}, s[{srd_}:{srd_+3}], 0 offen sc0 sc1')
    k('s_waitcnt vmcnt(0)')
    k(f'v_readfirstlane_b32 s38, v{tmp}')
    k('s_nop 3')
    k(f's_cmp_ge_u32 s38, {target}')
    d = k.label('polld')
    k(f's_cbranch_scc1 {d}')
    k('s_sleep 8')
    k(f's_branch {L}')
    k(f'{d}:')


def k_pre(preps):
    k = Kernel('pre_kernel')
    done = k.label('done'); lnl = k.label('ln'); pp = k.label('prep')
    k('s_cmp_ge_u32 s2, 364')
    k(f's_cbranch_scc1 {pp}')
    k('s_cmp_ge_u32 s2, 108')
    k(f's_cbranch_scc1 {lnl}')
    p = load_ptrs(k, ['c', 'w_mod', 'ws', 'dbg'], 4)
    k('v_lshrrev_b32 v1, 6, v0')
    k('v_and_b32 v2, 63, v0')
    k('v_readfirstlane_b32 s3, v1')
    k('v_lshrrev_b32 v10, 4, v2')
    k('v_and_b32 v11, 15, v2')
    k('v_mul_u32_u24 v3, 6912, v10')
    k('v_lshl_add_u32 v3, v11, 2, v3')
    k('s_mul_i32 s24, s3, 144*6912')
    k('s_lshl_b32 s25, s2, 6')
    k('s_add_u32 s24, s24, s25')
    k('v_lshlrev_b32 v4, 1, v0')
    k('s_waitcnt lgkmcnt(0)')
    srd(k, 12, p['c'], 'c')
    srd(k, 16, p['w_mod'], 'w_mod')
    srd(k, 20, p['ws'], 'mod')
    dbg_srd(k, 28, p['dbg'])
    for j in range(3):
        k(f'buffer_load_ushort v{5+j}, v4, s[12:15], 0 offen offset:{512*j}')
    for i in range(36):
        k(f'buffer_load_dword v{16+i}, v3, s[16:19], s24 offen')
        if i < 35:
            k('s_add_u32 s24, s24, 4*6912')
    k('s_waitcnt vmcnt(36)')
    k('v_lshlrev_b32 v9, 2, v0')
    for j in range(3):
        c = 5 + j
        k(f'v_lshlrev_b32 v{c}, 16, v{c}')
        k(f'v_mul_f32 v12, {f32bits(-LOG2E)}, v{c}')
        k('v_exp_f32 v12, v12')
        k('v_add_f32 v12, 1.0, v12')
        k('v_rcp_f32 v12, v12')
        k(f'v_mul_f32 v12, v{c}, v12')
        rbf(k, 12, 12)
        k(f'ds_write_b32 v9, v12 offset:{1024*j}')
    k('s_waitcnt lgkmcnt(0)')
    k('s_barrier')
    k('s_mul_i32 s26, s3, 576')
    k('v_lshl_add_u32 v12, v10, 2, s26')
    for i in range(36):
        k(f'ds_read_b32 v{56+i}, v12 offset:{16*i}')
        if i % 12 == 11:
            k('s_waitcnt lgkmcnt(0)')
    k('v_mov_b32 v12, 0')
    k('v_mov_b32 v13, 0')
    k('s_waitcnt vmcnt(0)')
    for i in range(36):
        k(f'v_lshlrev_b32 v14, 16, v{16+i}')
        k(f'v_and_b32 v15, 0xffff0000, v{16+i}')
        k(f'v_fmac_f32 v12, v14, v{56+i}')
        k(f'v_fmac_f32 v13, v15, v{56+i}')
    k('v_lshlrev_b32 v9, 3, v0')
    k('ds_write_b64 v9, v[12:13] offset:4096')
    k('s_waitcnt lgkmcnt(0)')
    k('s_barrier')
    k('s_cmp_lg_u32 s3, 0')
    k(f's_cbranch_scc1 {done}')
    k('v_and_b32 v9, 31, v2')
    k('v_lshlrev_b32 v9, 2, v9')
    for i in range(16):
        k(f'ds_read_b32 v{16+i}, v9 offset:{4096+128*i}')
    k('s_waitcnt lgkmcnt(0)')
    for i in range(1, 16):
        k(f'v_add_f32 v16, v16, v{16+i}')
    rbf(k, 16, 16)
    k('s_lshl_b32 s25, s2, 7')
    k('buffer_store_dword v16, v9, s[20:23], s25 offen sc0 sc1')
    k('s_waitcnt vmcnt(0)')
    k('s_cmp_ge_u32 s2, 36')
    k(f's_cbranch_scc1 {done}')
    k('v_mov_b32 v1, 1')
    k('v_mov_b32 v3, 0')
    k('s_mov_b64 exec, 1')
    k('buffer_atomic_add v1, v3, s[28:31], 0 offen sc1')
    k(f'{done}:')
    k('s_endpgm')
    k(f'{lnl}:')
    p = load_ptrs(k, ['x', 'ws', 'dbg'], 4)
    k('v_lshrrev_b32 v1, 5, v0')
    k('v_and_b32 v2, 31, v0')
    k('s_sub_u32 s3, s2, 108')
    k('s_lshl_b32 s3, s3, 3')
    k('v_add_u32 v1, s3, v1')
    k('v_mul_u32_u24 v3, 1152, v1')
    k('v_lshl_add_u32 v3, v2, 2, v3')
    k('v_lshlrev_b32 v4, 3, v2')
    k('s_waitcnt lgkmcnt(0)')
    srd(k, 12, p['x'], 'x')
    srd(k, 16, p['ws'], 'mod')
    srd(k, 20, p['ws'], 'h')
    dbg_srd(k, 28, p['dbg'])
    X, RAW, SH, SC = 16, 40, 52, 72
    for i in range(9):
        k(f'buffer_load_dword v{RAW+i}, v3, s[12:15], 0 offen offset:{128*i}')
    k('v_lshrrev_b32 v5, 4, v1')
    k('v_mul_u32_u24 v5, 18432, v5')
    k('v_lshrrev_b32 v6, 4, v2')
    k('v_lshl_add_u32 v5, v6, 10, v5')
    k('v_bfe_u32 v6, v2, 2, 2')
    k('v_lshl_add_u32 v5, v6, 8, v5')
    k('v_and_b32 v6, 15, v1')
    k('v_lshl_add_u32 v5, v6, 4, v5')
    k('v_and_b32 v6, 3, v2')
    k('v_lshl_add_u32 v5, v6, 2, v5')
    k('s_waitcnt vmcnt(0)')
    for i in range(9):
        k(f'v_lshlrev_b32 v{X+2*i}, 16, v{RAW+i}')
        k(f'v_and_b32 v{X+2*i+1}, 0xffff0000, v{RAW+i}')
    ln_core(k, X, 18, 6, 32, 576)
    k('v_mov_b32 v12, 0')
    k('v_readfirstlane_b32 s37, v0')
    sk = k.label('skip')
    k('s_nop 3')
    k('s_cmp_lg_u32 s37, 0')
    k(f's_cbranch_scc1 {sk}')
    poll(k, 28, 12, 36, 13)
    k(f'{sk}:')
    k('s_barrier')
    k('s_mov_b32 s33, 2304')
    for i in range(9):
        k(f'buffer_load_dwordx2 v[{SH+2*i}:{SH+2*i+1}], v4, s[16:19], 0 offen offset:{256*i} sc0 sc1')
        k(f'buffer_load_dwordx2 v[{SC+2*i}:{SC+2*i+1}], v4, s[16:19], s33 offen offset:{256*i} sc0 sc1')
    for i in range(0, 18, 2):
        a, b = X + i, X + i + 1
        k(f's_waitcnt vmcnt({16 - i + i//2})')
        k(f'v_fma_f32 v{SC+i}, v{SC+i}, v10, v10')
        k(f'v_fma_f32 v{SC+i+1}, v{SC+i+1}, v10, v10')
        k(f'v_fma_f32 v{a}, v{a}, v{SC+i}, v{SH+i}')
        k(f'v_fma_f32 v{b}, v{b}, v{SC+i+1}, v{SH+i+1}')
        k(f'v_cvt_pk_bf16_f32 v{a}, v{a}, v{b}')
        k(f's_mov_b32 s36, {2048*(i//2)}')
        k(f'buffer_store_dword v{a}, v5, s[20:23], s36 offen sc0 sc1')
    k('s_endpgm')
    k(f'{pp}:')
    nwg = emit_prep_section(k, 364, list(preps), 4, done)
    return k, (364 + nwg, 256, 4 * 9216)
```

```python
from common import *
import re


def emit_prep_b(k, src, ldb, K, N, W, kmap, dst, widx_sreg, lds_base_sreg, qperm=False):
    NBK = N // W
    CH = W // 8
    NT = W // 16
    if NBK == 1:
        k(f's_mov_b32 s21, s{widx_sreg}')
    else:
        magic = (1 << 32) // NBK + 1
        k(f's_mov_b32 s20, {magic}')
        k(f's_mul_hi_u32 s21, s{widx_sreg}, s20')
    k(f's_mul_i32 s22, s21, {NBK}')
    k(f's_sub_u32 s22, s{widx_sreg}, s22')
    k(f's_mul_i32 s23, s21, {32*ldb}')
    k(f's_mul_i32 s24, s22, {2*W}')
    k('s_add_u32 s23, s23, s24')
    k(f's_mov_b32 s25, {ldb}')
    mg = 65536 // CH + 1
    for i in range(NT // 2 + (NT % 2)):
        pass
    nins = 32 * CH // 64
    rem = 32 * CH - nins * 64
    assert rem == 0
    for i in range(nins):
        k(f'v_add_u32 v3, {64*i}, v2')
        k(f'v_mul_u32_u24 v4, {mg}, v3')
        k('v_lshrrev_b32 v4, 16, v4')
        k(f'v_mul_u32_u24 v5, {CH}, v4')
        k('v_sub_u32 v5, v3, v5')
        k('v_mul_lo_u32 v4, v4, s25')
        k('v_lshl_add_u32 v4, v5, 4, v4')
        k(f's_add_u32 m0, s{lds_base_sreg}, {1024*i}')
        k('buffer_load_dwordx4 v4, s[12:15], s23 offen lds')
    k('v_lshrrev_b32 v3, 4, v2')
    k('v_bfe_u32 v4, v2, 2, 2')
    if kmap == 'nat':
        k('v_lshl_add_u32 v4, v3, 3, v4'); hfstep = 4
    else:
        k('v_lshl_add_u32 v4, v3, 2, v4'); hfstep = 16
    k(f'v_mul_u32_u24 v4, {2*W}, v4')
    k('v_and_b32 v5, 3, v2')
    k(f'v_lshl_add_u32 v4, v5, {4 if qperm else 3}, v4')
    k(f'v_add_u32 v4, s{lds_base_sreg}, v4')
    if qperm:
        k(f's_mul_i32 s26, s22, {(K//32)*NT*1024}')
        k(f's_mul_i32 s27, s21, {NT*1024}')
    else:
        k(f's_mul_i32 s26, s21, {(N//16)*1024}')
        k(f's_mul_i32 s27, s22, {NT*1024}')
    k('s_add_u32 s26, s26, s27')
    k('v_lshlrev_b32 v5, 4, v2')
    k('s_waitcnt vmcnt(0)')
    for nt in range(NT):
        off = (64 * (nt >> 1) + 8 * (nt & 1)) if qperm else 32 * nt
        r = 8 + 4 * nt
        k(f'ds_read_b64_tr_b16 v[{r}:{r+1}], v4 offset:{off}')
        k(f'ds_read_b64_tr_b16 v[{r+2}:{r+3}], v4 offset:{off + hfstep*2*W}')
    k('s_waitcnt lgkmcnt(0)')
    for nt in range(NT):
        r = 8 + 4 * nt
        if nt % 4 == 0 and nt:
            k('s_add_u32 s26, s26, 4096')
        k(f'buffer_store_dwordx4 v[{r}:{r+3}], v5, s[16:19], s26 offen offset:{1024*(nt%4)} sc0 sc1')
    k('s_endpgm')


def emit_prep_a(k, lda, widx_sreg, lds_base_sreg):
    k(f's_lshr_b32 s21, s{widx_sreg}, 3')
    k(f's_and_b32 s22, s{widx_sreg}, 7')
    k(f's_mul_i32 s23, s21, {16*lda}')
    k('s_lshl_b32 s24, s22, 9')
    k('s_add_u32 s23, s23, s24')
    k('v_lshrrev_b32 v3, 5, v2')
    k('v_and_b32 v4, 31, v2')
    k(f'v_mul_u32_u24 v3, {lda}, v3')
    k('v_lshl_add_u32 v3, v4, 4, v3')
    for i in range(8):
        k(f's_add_u32 m0, s{lds_base_sreg}, {1024*i}')
        k('buffer_load_dwordx4 v3, s[12:15], s23 offen lds')
        k(f's_add_u32 s23, s23, {2*lda}')
    k('v_and_b32 v3, 15, v2')
    k('v_lshrrev_b32 v4, 4, v2')
    k('v_lshlrev_b32 v3, 9, v3')
    k('v_lshl_add_u32 v3, v4, 3, v3')
    k(f'v_add_u32 v3, s{lds_base_sreg}, v3')
    k(f's_lshl_b32 s26, s{widx_sreg}, 13')
    k('v_lshlrev_b32 v5, 4, v2')
    k('s_add_u32 s27, s26, 4096')
    k('s_waitcnt vmcnt(0)')
    for i in range(8):
        k(f'ds_read_b64 v[{8+4*i}:{9+4*i}], v3 offset:{64*i}')
        k(f'ds_read_b64 v[{10+4*i}:{11+4*i}], v3 offset:{64*i+32}')
    k('s_waitcnt lgkmcnt(0)')
    for i in range(8):
        k(f'buffer_store_dwordx4 v[{8+4*i}:{11+4*i}], v5, s[16:19], s{26 if i < 4 else 27} offen offset:{1024*(i%4)} sc0 sc1')
    k('s_endpgm')


TASKS = {
    'wq': ('wq', 8192, 576, 4096, 128, 'nat', 'wqf', True),
    'wo': ('wo', 1152, 4096, 576, 144, 'mfma', 'wof', False),
    'w_in': ('w_in', 9216, 576, 4608, 144, 'mfma', 'winf', False),
    'w_out': ('w_out', 1152, 2304, 576, 144, 'mfma', 'woutf', False),
}


def ntasks(name):
    if name == 'w_sp':
        return 1024
    if name == 'v':
        return 16 * 32 * 2
    _, _, K, N, W, _, _, _ = TASKS[name]
    return (K // 32) * (N // W)


def emit_prep_section(k, first_wg, names, waves_per_wg, done):
    k('v_lshrrev_b32 v1, 6, v0')
    k('v_and_b32 v2, 63, v0')
    k('v_readfirstlane_b32 s3, v1')
    k('s_nop 3')
    k(f's_cmp_ge_u32 s3, {waves_per_wg}')
    k(f's_cbranch_scc1 {done}')
    k(f's_sub_u32 s30, s2, {first_wg}')
    k(f's_mul_i32 s30, s30, {waves_per_wg}')
    k('s_add_u32 s30, s30, s3')
    k('s_mul_i32 s31, s3, 9216')
    base = 0
    labs = []
    for n in names:
        lab = k.label('prep_' + n.replace('_', ''))
        labs.append(lab)
        k(f's_cmp_lt_u32 s30, {base + ntasks(n)}')
        k(f's_cbranch_scc1 {lab}')
        base += ntasks(n)
    k(f's_branch {done}')
    base = 0
    for n, lab in zip(names, labs):
        k(f'{lab}:')
        if base:
            k(f's_sub_u32 s30, s30, {base}')
        src = 'w_sp' if n == 'w_sp' else ('v' if n == 'v' else TASKS[n][0])
        dst = 'wspf' if n == 'w_sp' else ('vt' if n == 'v' else TASKS[n][6])
        p = load_ptrs(k, [src, 'ws'], 4)
        k('s_waitcnt lgkmcnt(0)')
        srd(k, 12, p[src], src)
        srd(k, 16, p['ws'], dst)
        if n == 'w_sp':
            emit_prep_a(k, 4096, 30, 31)
        elif n == 'v':
            emit_prep_b(k, 'v', 256, 32768, 128, 128, 'mfma', 'vt', 30, 31)
        else:
            s_, ldb, K, N, W, kmap, d_, qp = TASKS[n]
            emit_prep_b(k, s_, ldb, K, N, W, kmap, d_, 30, 31, qp)
        base += ntasks(n)
    return (base + waves_per_wg - 1) // waves_per_wg


class Remap:
    def __init__(self, k, soff, voff, end):
        self.k = k; self.soff = soff; self.voff = voff; self.end = end

    def label(self, b='L'):
        return self.k.label(b)

    def __call__(self, text):
        def f(m):
            c = m.group(1)
            off, lo = (self.soff, 3) if c == 's' else (self.voff, 8)
            if m.group(2) is not None:
                a, b = int(m.group(2)), int(m.group(3))
                return f'{c}[{a+off}:{b+off}]' if a >= lo else m.group(0)
            n = int(m.group(4))
            return f'{c}{n+off}' if n >= lo else m.group(0)
        if text.strip() == 's_endpgm':
            text = f's_branch {self.end}'
        else:
            text = re.sub(r'\b([sv])\[(\d+):(\d+)\]|\b(?<![\w.])([sv])(?=\d)', lambda m: m.group(0), text)
            text = re.sub(r'\b([sv])(?:\[(\d+):(\d+)\]|(\d+)\b)', f, text)
        self.k(text)


def emit_prep_inline(k, names, task_sreg, lds_sreg, soff, voff):
    end = k.label('prepend')
    r = Remap(k, soff, voff, end)
    k(f's_mov_b32 s{30+soff}, s{task_sreg}')
    k(f's_mov_b32 s{31+soff}, s{lds_sreg}')
    base = 0
    labs = []
    for n in names:
        lab = k.label('prep_' + n.replace('_', ''))
        labs.append(lab)
        r(f's_cmp_lt_u32 s30, {base + ntasks(n)}')
        k(f's_cbranch_scc1 {lab}')
        base += ntasks(n)
    k(f's_branch {end}')
    base = 0
    for n, lab in zip(names, labs):
        k(f'{lab}:')
        if base:
            r(f's_sub_u32 s30, s30, {base}')
        src = 'w_sp' if n == 'w_sp' else TASKS[n][0]
        dst = 'wspf' if n == 'w_sp' else TASKS[n][6]
        p = load_ptrs(r, [src, 'ws'], 4)
        r('s_waitcnt lgkmcnt(0)')
        srd(r, 12, p[src], src)
        srd(r, 16, p['ws'], dst)
        if n == 'w_sp':
            emit_prep_a(r, 4096, 30, 31)
        else:
            s_, ldb, K, N, W, kmap, d_, qp = TASKS[n]
            emit_prep_b(r, s_, ldb, K, N, W, kmap, d_, 30, 31, qp)
        base += ntasks(n)
    k(f'{end}:')
    k.fence(4)
    return base
```

```python
from common import *
from prep import *
import math

LOG2E = 1.4426950408889634


def k_mod(preps=('v', 'wq'), wpw=4):
    k = Kernel('mod_kernel')
    done = k.label('done')
    vp = k.label('vprep')
    k('s_cmp_ge_u32 s2, 27')
    k(f's_cbranch_scc1 {vp}')
    p = load_ptrs(k, ['c', 'w_mod', 'ws'], 4)
    k('v_lshrrev_b32 v1, 6, v0')
    k('v_and_b32 v2, 63, v0')
    k('v_readfirstlane_b32 s3, v1')
    k('s_waitcnt lgkmcnt(0)')
    srd(k, 12, p['c'], 'c')
    srd(k, 16, p['w_mod'], 'w_mod')
    srd(k, 20, p['ws'], 'mod')
    k('s_mul_i32 s24, s3, 36*6912')
    k('s_lshl_b32 s25, s2, 8')
    k('s_add_u32 s24, s24, s25')
    k('v_lshlrev_b32 v3, 2, v2')
    k('v_lshlrev_b32 v4, 1, v0')
    k('buffer_load_ushort v5, v4, s[12:15], 0 offen')
    for i in range(36):
        k(f'buffer_load_dword v{16+i}, v3, s[16:19], s24 offen')
        if i < 35:
            k('s_add_u32 s24, s24, 6912')
    k('s_waitcnt vmcnt(36)')
    k('v_lshlrev_b32 v5, 16, v5')
    k(f'v_mul_f32 v6, {f32bits(-LOG2E)}, v5')
    k('v_exp_f32 v6, v6')
    k('v_add_f32 v6, 1.0, v6')
    k('v_rcp_f32 v7, v6')
    k('v_mul_f32 v8, v5, v7')
    k('v_fma_f32 v9, -v8, v6, v5')
    k('v_fma_f32 v8, v9, v7, v8')
    k('v_mul_f32 v9, v5, v7')
    k('v_cmp_o_f32 vcc, v8, v8')
    k('v_cndmask_b32 v8, v9, v8, vcc')
    rbf(k, 8, 8)
    k('v_lshlrev_b32 v9, 2, v0')
    k('ds_write_b32 v9, v8')
    k('s_waitcnt lgkmcnt(0)')
    k('s_barrier')
    k('s_mul_i32 s26, s3, 144')
    k('v_mov_b32 v10, s26')
    for i in range(9):
        k(f'ds_read_b128 v[{56+4*i}:{59+4*i}], v10 offset:{16*i}')
    k('v_mov_b32 v12, 0')
    k('v_mov_b32 v13, 0')
    k('s_waitcnt vmcnt(0) lgkmcnt(0)')
    for i in range(36):
        k(f'v_lshlrev_b32 v14, 16, v{16+i}')
        k(f'v_and_b32 v15, 0xffff0000, v{16+i}')
        k(f'v_fmac_f32 v12, v14, v{56+i}')
        k(f'v_fmac_f32 v13, v15, v{56+i}')
    k('v_lshlrev_b32 v9, 3, v0')
    k('ds_write_b64 v9, v[12:13] offset:4096')
    k('s_waitcnt lgkmcnt(0)')
    k('s_barrier')
    k('s_cmp_ge_u32 s3, 2')
    k(f's_cbranch_scc1 {done}')
    k('v_lshlrev_b32 v9, 2, v0')
    for i in range(16):
        k(f'ds_read_b32 v{16+i}, v9 offset:{4096+512*i}')
    k('s_waitcnt lgkmcnt(0)')
    for i in range(1, 16):
        k(f'v_add_f32 v16, v16, v{16+i}')
    rbf(k, 16, 16)
    k('s_lshl_b32 s25, s2, 9')
    k('buffer_store_dword v16, v9, s[20:23], s25 offen')
    k(f'{done}:')
    k('s_endpgm')
    k(f'{vp}:')
    nwg = emit_prep_section(k, 27, list(preps), wpw, done)
    return k, (27 + nwg, 1024, wpw * 9216)


def ln_core(k, X, n, tmp, lanes, ncols, eps=1e-5):
    s, t, mu, var, r = tmp, tmp + 1, tmp + 2, tmp + 3, tmp + 4
    k(f'v_add_f32 v{s}, v{X}, v{X+1}')
    k(f'v_add_f32 v{t}, v{X+2}, v{X+3}')
    for i in range(4, n, 2):
        k(f'v_add_f32 v{s}, v{s}, v{X+i}')
        k(f'v_add_f32 v{t}, v{t}, v{X+i+1}')
    k(f'v_add_f32 v{s}, v{s}, v{t}')
    reduce_add(k, s, t, lanes)
    k(f'v_mul_f32 v{mu}, {f32bits(1.0/ncols)}, v{s}')
    for i in range(n):
        k(f'v_sub_f32 v{X+i}, v{X+i}, v{mu}')
    k(f'v_mul_f32 v{var}, v{X}, v{X}')
    k(f'v_mul_f32 v{s}, v{X+1}, v{X+1}')
    for i in range(2, n, 2):
        k(f'v_fmac_f32 v{var}, v{X+i}, v{X+i}')
        k(f'v_fmac_f32 v{s}, v{X+i+1}, v{X+i+1}')
    k(f'v_add_f32 v{var}, v{var}, v{s}')
    reduce_add(k, var, t, lanes)
    k(f'v_mov_b32 v{t}, {f32bits(eps)}')
    k(f'v_fmac_f32 v{t}, {f32bits(1.0/ncols)}, v{var}')
    k(f'v_rsq_f32 v{r}, v{t}')
    k(f'v_mul_f32 v{s}, v{t}, v{r}')
    k(f'v_fma_f32 v{s}, -v{s}, v{r}, 1.0')
    k(f'v_mul_f32 v{mu}, 0.5, v{r}')
    k(f'v_fmac_f32 v{r}, v{s}, v{mu}')


def k_ln(which, preps=()):
    k = Kernel(f'ln{which}_kernel')
    done = k.label('done')
    pp = k.label('prep')
    k('s_cmp_ge_u32 s2, 256')
    k(f's_cbranch_scc1 {pp if preps else done}')
    p = load_ptrs(k, ['x', 'ws'], 4)
    k('v_lshrrev_b32 v1, 5, v0')
    k('v_and_b32 v2, 31, v0')
    k('s_lshl_b32 s3, s2, 3')
    k('v_add_u32 v1, s3, v1')
    k('s_waitcnt lgkmcnt(0)')
    srd(k, 12, p['x'], 'x')
    srd(k, 16, p['ws'], 'mod')
    srd(k, 20, p['ws'], 'h' if which == 1 else 'h2')
    if which == 2:
        srd(k, 24, p['ws'], 'p2')
        srd(k, 28, p['ws'], 'x1')
    k('v_mul_u32_u24 v3, 1152, v1')
    k('v_lshl_add_u32 v3, v2, 2, v3')
    k('v_lshlrev_b32 v4, 3, v2')
    X = 16
    RAW = 40
    SH = 52
    SC = 72
    GA = 92
    PART = 112
    for i in range(9):
        k(f'buffer_load_dword v{RAW+i}, v3, s[12:15], 0 offen offset:{128*i}')
    js, jc = (0, 1) if which == 1 else (3, 4)
    k(f's_mov_b32 s32, {js*2304}')
    k(f's_mov_b32 s33, {jc*2304}')
    k(f's_mov_b32 s34, {2*2304}')
    for i in range(9):
        k(f'buffer_load_dwordx2 v[{SH+2*i}:{SH+2*i+1}], v4, s[16:19], s32 offen offset:{256*i}')
        k(f'buffer_load_dwordx2 v[{SC+2*i}:{SC+2*i+1}], v4, s[16:19], s33 offen offset:{256*i}')
    if which == 2:
        for i in range(9):
            k(f'buffer_load_dwordx2 v[{GA+2*i}:{GA+2*i+1}], v4, s[16:19], s34 offen offset:{256*i}')
        k('v_lshlrev_b32 v5, 1, v3')
        for sp in range(4):
            k(f's_mov_b32 s35, {sp*2048*2304}')
            for i in range(9):
                k(f'buffer_load_dwordx2 v[{PART+18*sp+2*i}:{PART+18*sp+2*i+1}], v5, s[24:27], s35 offen offset:{256*i}')
    k('s_waitcnt vmcnt(0)')
    for i in range(9):
        k(f'v_lshlrev_b32 v{X+2*i}, 16, v{RAW+i}')
        k(f'v_and_b32 v{X+2*i+1}, 0xffff0000, v{RAW+i}')
    if which == 2:
        for i in range(18):
            k(f'v_add_f32 v{PART+i}, v{PART+i}, v{PART+18+i}')
            k(f'v_add_f32 v{PART+36+i}, v{PART+36+i}, v{PART+54+i}')
            k(f'v_add_f32 v{PART+i}, v{PART+i}, v{PART+36+i}')
        for i in range(0, 18, 2):
            a, b = PART + i, PART + i + 1
            k(f'v_fmac_f32 v{X+i}, v{GA+i}, v{a}')
            k(f'v_fmac_f32 v{X+i+1}, v{GA+i+1}, v{b}')
            k(f'v_cvt_pk_bf16_f32 v{RAW+i//2}, v{X+i}, v{X+i+1}')
            k(f'v_lshlrev_b32 v{X+i}, 16, v{RAW+i//2}')
            k(f'v_and_b32 v{X+i+1}, 0xffff0000, v{RAW+i//2}')
            k(f'buffer_store_dword v{RAW+i//2}, v3, s[28:31], 0 offen offset:{128*(i//2)}')
    ln_core(k, X, 18, 6, 32, 576)
    k('v_lshrrev_b32 v5, 4, v1')
    k('v_mul_u32_u24 v5, 18432, v5')
    k('v_lshrrev_b32 v6, 4, v2')
    k('v_lshl_add_u32 v5, v6, 10, v5')
    k('v_bfe_u32 v6, v2, 2, 2')
    k('v_lshl_add_u32 v5, v6, 8, v5')
    k('v_and_b32 v6, 15, v1')
    k('v_lshl_add_u32 v5, v6, 4, v5')
    k('v_and_b32 v6, 3, v2')
    k('v_lshl_add_u32 v5, v6, 2, v5')
    for i in range(0, 18, 2):
        a, b = X + i, X + i + 1
        k(f'v_fma_f32 v{SC+i}, v{SC+i}, v10, v10')
        k(f'v_fma_f32 v{SC+i+1}, v{SC+i+1}, v10, v10')
        k(f'v_fma_f32 v{a}, v{a}, v{SC+i}, v{SH+i}')
        k(f'v_fma_f32 v{b}, v{b}, v{SC+i+1}, v{SH+i+1}')
        k(f'v_cvt_pk_bf16_f32 v{a}, v{a}, v{b}')
        k(f's_mov_b32 s36, {2048*(i//2)}')
        k(f'buffer_store_dword v{a}, v5, s[20:23], s36 offen')
    k(f'{done}:')
    k('s_endpgm')
    nwg = 0
    if preps:
        k(f'{pp}:')
        nwg = emit_prep_section(k, 256, list(preps), 4, done)
    return k, (256 + nwg, 256, 4 * 9216 if preps else 0)


def k_lnz(preps=()):
    k = Kernel('lnz_kernel')
    done = k.label('done')
    pp = k.label('prep')
    k('s_cmp_ge_u32 s2, 256')
    k(f's_cbranch_scc1 {pp if preps else done}')
    p = load_ptrs(k, ['ws'], 4)
    k('v_lshrrev_b32 v1, 6, v0')
    k('v_and_b32 v2, 63, v0')
    k('v_readfirstlane_b32 s22, v1')
    k('v_and_b32 v4, 3, v2')
    k('v_bfe_u32 v5, v2, 2, 2')
    k('v_lshrrev_b32 v1, 4, v2')
    k('v_lshlrev_b32 v3, 4, v4')
    k('v_lshl_add_u32 v3, v5, 8, v3')
    k('v_lshl_add_u32 v3, v1, 10, v3')
    k('s_lshr_b32 s25, s2, 2')
    k('s_and_b32 s26, s2, 3')
    k(f's_mul_i32 s20, s25, {288*1024}')
    k('s_mul_i32 s21, s22, 12288')
    k('s_add_u32 s20, s20, s21')
    k('s_lshl_b32 s27, s26, 6')
    k('s_add_u32 s20, s20, s27')
    k(f's_add_u32 s20, s20, {144*1024}')
    k('s_add_u32 s28, s20, 4096')
    k('s_add_u32 s29, s20, 8192')
    k(f's_mul_i32 s24, s25, {144*1024}')
    k('s_add_u32 s24, s24, s21')
    k('s_lshl_b32 s27, s26, 8')
    k('s_add_u32 s24, s24, s27')
    k('s_waitcnt lgkmcnt(0)')
    srd(k, 12, p['ws'], 'z')
    srd(k, 16, p['ws'], 'z2')
    RAW = 16
    X = 28
    for i, sr_ in enumerate((20, 28, 29)):
        k(f'buffer_load_dwordx4 v[{RAW+4*i}:{RAW+4*i+3}], v3, s[12:15], s{sr_} offen')
    k('s_waitcnt vmcnt(0)')
    for i in range(3):
        for hf in range(2):
            for d in range(2):
                k(f'v_lshlrev_b32 v{X+12*hf+4*i+2*d}, 16, v{RAW+4*i+2*hf+d}')
                k(f'v_and_b32 v{X+12*hf+4*i+2*d+1}, 0xffff0000, v{RAW+4*i+2*hf+d}')

    def wg_reduce(regs, ldsoff):
        for r_ in regs:
            k(f'v_add_f32_dpp v{r_}, v{r_}, v{r_} row_shr:4 row_mask:0xf bank_mask:0xf' if False else
              f'v_add_f32_dpp v{r_}, v{r_}, v{r_} row_ror:4 row_mask:0xf bank_mask:0xf')
        for r_ in regs:
            k(f'v_add_f32_dpp v{r_}, v{r_}, v{r_} row_ror:8 row_mask:0xf bank_mask:0xf')
        k('v_lshlrev_b32 v6, 9, v4')
        k('v_lshl_add_u32 v6, v1, 3, v6')
        k('s_lshl_b32 s23, s22, 5')
        k('v_add_u32 v6, s23, v6')
        k(f'ds_write_b64 v6, v[{regs[0]}:{regs[1]}] offset:{ldsoff}')
        k('s_waitcnt lgkmcnt(0)')
        k('s_barrier')
        k('v_lshl_add_u32 v7, v1, 2, v5')
        k('v_mul_u32_u24 v7, 24, v7')
        k('v_lshl_add_u32 v7, v4, 9, v7')
        for e in range(3):
            k(f'ds_read_b64 v[{RAW+2*e}:{RAW+2*e+1}], v7 offset:{ldsoff+8*e}')
        k('s_waitcnt lgkmcnt(0)')
        for h_ in range(2):
            k(f'v_add_f32 v{regs[h_]}, v{RAW+h_}, v{RAW+2+h_}')
            k(f'v_add_f32 v{regs[h_]}, v{regs[h_]}, v{RAW+4+h_}')
        for r_ in regs:
            k(f'v_add_f32_dpp v{r_}, v{r_}, v{r_} row_ror:4 row_mask:0xf bank_mask:0xf')
        for r_ in regs:
            k(f'v_add_f32_dpp v{r_}, v{r_}, v{r_} row_ror:8 row_mask:0xf bank_mask:0xf')
        k(f'ds_swizzle_b32 v6, v{regs[0]} offset:0x401F')
        k(f'ds_swizzle_b32 v7, v{regs[1]} offset:0x401F')
        k('s_waitcnt lgkmcnt(0)')
        k(f'v_add_f32 v{regs[0]}, v{regs[0]}, v6')
        k(f'v_add_f32 v{regs[1]}, v{regs[1]}, v7')
        for r_ in regs:
            k(f'v_mov_b32 v6, v{r_}')
            k(f'v_permlane32_swap_b32 v6, v{r_}')
            k(f'v_add_f32 v{r_}, v{r_}, v6')
    MU, VA, DEN, RC = 8, 10, 12, 14
    for hf in range(2):
        k(f'v_add_f32 v{MU+hf}, v{X+12*hf}, v{X+12*hf+1}')
        for i in range(2, 12):
            k(f'v_add_f32 v{MU+hf}, v{MU+hf}, v{X+12*hf+i}')
    wg_reduce([MU, MU + 1], 0)
    for hf in range(2):
        k(f'v_mul_f32 v{MU+hf}, {f32bits(1.0/2304)}, v{MU+hf}')
        k(f'v_mov_b32 v{VA+hf}, 0')
        for i in range(12):
            k(f'v_sub_f32 v{X+12*hf+i}, v{X+12*hf+i}, v{MU+hf}')
            k(f'v_fmac_f32 v{VA+hf}, v{X+12*hf+i}, v{X+12*hf+i}')
    wg_reduce([VA, VA + 1], 2048)
    RS = 4608 + 64
    for hf in range(2):
        mu, var, den, r = MU + hf, VA + hf, DEN + hf, RC + hf
        k(f'v_mov_b32 v{den}, {f32bits(1e-5)}')
        k(f'v_fmac_f32 v{den}, {f32bits(1.0/2304)}, v{var}')
        k(f'v_rsq_f32 v{r}, v{den}')
        k(f'v_mul_f32 v6, v{den}, v{r}')
        k(f'v_fma_f32 v6, -v6, v{r}, 1.0')
        k(f'v_mul_f32 v7, 0.5, v{r}')
        k(f'v_fmac_f32 v{r}, v6, v7')
    k('s_mul_i32 s23, s22, 384')
    k('s_add_u32 s23, s23, 4096')
    k(f'v_mul_u32_u24 v7, {RS}, v4')
    k('v_lshl_add_u32 v7, v5, 3, v7')
    k('v_lshl_add_u32 v7, v1, 5, v7')
    k('v_add_u32 v7, s23, v7')
    for hf in range(2):
        mu, den, r = MU + hf, DEN + hf, RC + hf
        for i in range(3):
            x = X + 12 * hf + 4 * i
            for c in range(4):
                k(f'v_mul_f32 v{x+c}, v{x+c}, v{r}')
            k(f'v_cvt_pk_bf16_f32 v{x}, v{x}, v{x+1}')
            k(f'v_cvt_pk_bf16_f32 v{x+1}, v{x+2}, v{x+3}')
            k(f'ds_write_b64 v7, v[{x}:{x+1}] offset:{4*RS*hf + 128*i}')
    k(f'v_mul_u32_u24 v6, {RS}, v5')
    k('v_lshl_add_u32 v6, v4, 3, v6')
    k('v_lshl_add_u32 v6, v1, 5, v6')
    k('v_add_u32 v6, s23, v6')
    k('v_and_b32 v3, 15, v2')
    k('v_lshlrev_b32 v3, 4, v3')
    k('v_lshl_add_u32 v3, v1, 10, v3')
    k('s_waitcnt lgkmcnt(0)')
    for i in range(3):
        k(f'ds_read_b64_tr_b16 v[{RAW+4*i}:{RAW+4*i+1}], v6 offset:{128*i}')
        k(f'ds_read_b64_tr_b16 v[{RAW+4*i+2}:{RAW+4*i+3}], v6 offset:{128*i+4*RS}')
    k('s_waitcnt lgkmcnt(0)')
    for i in range(3):
        k(f'buffer_store_dwordx4 v[{RAW+4*i}:{RAW+4*i+3}], v3, s[16:19], s24 offen sc0 sc1')
        k('s_add_u32 s24, s24, 4096')
    k(f'{done}:')
    k('s_endpgm')
    nwg = 0
    if preps:
        k(f'{pp}:')
        nwg = emit_prep_section(k, 256, list(preps), 12, done)
    return k, (256 + nwg, 768, 4096 + 8 * RS)


def k_final():
    k = Kernel('final_kernel')
    done = k.label('done')
    k('s_cmp_ge_u32 s2, 1152')
    k(f's_cbranch_scc1 {done}')
    p = load_ptrs(k, ['out', 'ws'], 4)
    k('s_lshl_b32 s3, s2, 8')
    k('v_add_u32 v1, s3, v0')
    k('s_waitcnt lgkmcnt(0)')
    srd(k, 12, p['ws'], 'p5')
    srd(k, 16, p['ws'], 'x1')
    srd(k, 20, p['out'], 'out')
    srd(k, 24, p['ws'], 'mod')
    k('v_lshlrev_b32 v2, 4, v1')
    k('v_lshlrev_b32 v3, 3, v1')
    k('s_mov_b32 s28, 29826162')
    k('v_mul_hi_u32 v4, v1, s28')
    k('v_mul_u32_u24 v4, 144, v4')
    k('v_sub_u32 v4, v1, v4')
    k('v_lshlrev_b32 v4, 4, v4')
    for sp in range(4):
        k(f's_mov_b32 s29, {sp*2048*2304}')
        k(f'buffer_load_dwordx4 v[{8+4*sp}:{11+4*sp}], v2, s[12:15], s29 offen')
    k('buffer_load_dwordx2 v[24:25], v3, s[16:19], 0 offen')
    k(f's_mov_b32 s29, {5*2304}')
    k('buffer_load_dwordx4 v[28:31], v4, s[24:27], s29 offen')
    k('s_waitcnt vmcnt(0)')
    for i in range(4):
        k(f'v_add_f32 v{8+i}, v{8+i}, v{12+i}')
        k(f'v_add_f32 v{16+i}, v{16+i}, v{20+i}')
        k(f'v_add_f32 v{8+i}, v{8+i}, v{16+i}')
    for i in (0, 2):
        a, b = 8 + i, 9 + i
        k(f'v_lshlrev_b32 v6, 16, v{24+i//2}')
        k(f'v_and_b32 v7, 0xffff0000, v{24+i//2}')
        k(f'v_fma_f32 v{a}, v{28+i}, v{a}, v6')
        k(f'v_fma_f32 v{b}, v{29+i}, v{b}, v7')
        k(f'v_cvt_pk_bf16_f32 v{32+i//2}, v{a}, v{b}')
    k('buffer_store_dwordx2 v[32:33], v3, s[20:23], 0 offen')
    k(f'{done}:')
    k('s_endpgm')
    return k, (1152, 256, 0)
```

```python
import sys
from common import *
from small import *
from gemm import *
from attn import *
from attn16 import *
from gemm2 import *
from gemm3 import *
from pre import *
from g5f import *
from ln2f import *

def build(rounding=True, stamp=False):
    R1 = 8
    R1 = 4
    ks = [k_mod(), k_ln(1, ('wo', 'w_out')), k_attn16(stamp=(stamp == 'attn'), preps=False),
          k_gemm3('g2_kernel', 'o', 131072, 'wof', 36, 16, 1, 4, 4, 'part2', stamp=(stamp == 'g2'), R=R1),
          k_ln2f(('w_in', 'w_sp')),
          k_gemm3('g3_kernel', 'h2', 18432, 'winf', 288, 9, 2, 16, 1, 'gelu', stamp=(stamp == 'g3')),
          k_lnz(),
          k_gemm3('g4_kernel', 'wspf', 65536, 'z2', 144, 32, 1, 16, 1, 'gate', stamp=(stamp == 'g4'), R=R1),
          k_g5f()]
    ref = open('adaLN_cond__gqa_block_cached__mixer_gmlp__prompt.s.ref').read()
    hdr = ''.join(l + '\n' for l in ref.split('\n') if l.startswith(';') and '@launch' not in l and 'Override' not in l and 'grid=ceil' not in l)
    for k, (g, b, lds) in ks:
        hdr += f'; @launch kernel={k.name} grid=({g},1,1) block=({b},1,1) lds={lds}\n'
    body = '.amdgcn_target "amdgcn-amd-amdhsa--gfx950"\n.text\n'
    for k, _ in ks:
        body += f'.globl {k.name}\n.type {k.name},@function\n' + k.text()
    body += '.section .rodata,"a"\n'
    for k, _ in ks:
        body += k.desc()
    import re
    body = re.sub(r'(buffer_store_dword[x24]* .* offen( offset:[0-9]+)?)\n', r'\1 sc0 sc1\n', body)
    body = body.replace(' NOSC', '')
    return hdr + body

if __name__ == '__main__':
    out = sys.argv[1] if len(sys.argv) > 1 else 'adaLN_cond__gqa_block_cached__mixer_gmlp__prompt.s'
    rounding = 'round' in sys.argv[2:]
    open(out, 'w').write(build(rounding, sys.argv[2] if len(sys.argv) > 2 else False))
```

```python
from common import *
from attn import Cnt
from prep import emit_prep_inline
import math
import numpy as np

LOG2E = 1.4426950408889634
MF = 'v_mfma_f32_16x16x32_bf16'


def k_attn16(stamp=False, BAR=10, prio=False, preps=(), SMEND=27, DSTART=4, DSTEP=3):
    k = Kernel('attn_kernel')
    done = k.label('done')
    k('s_cmp_ge_u32 s2, 256')
    k(f's_cbranch_scc1 {done}')
    p = load_ptrs(k, ['k', 'v', 'wq', 'ws'], 4)
    k('s_and_b32 s40, s2, 7')
    k('s_lshr_b32 s41, s2, 3')
    k('s_lshr_b32 s42, s41, 4')
    k('s_lshl_b32 s43, s40, 1')
    k('s_add_u32 s42, s42, s43')
    k('s_bfe_u32 s43, s41, 0x10003')
    k('s_lshl_b32 s44, s42, 1')
    k('s_add_u32 s43, s43, s44')
    k('s_and_b32 s44, s41, 7')
    k('v_lshrrev_b32 v1, 6, v0')
    k('v_and_b32 v2, 63, v0')
    k('v_readfirstlane_b32 s45, v1')
    k('s_waitcnt lgkmcnt(0)')
    srd(k, 12, p['k'], 'k')
    srd(k, 16, p['ws'], 'vt')
    srd(k, 20, p['ws'], 'wqf')
    srd(k, 24, p['ws'], 'h')
    srd(k, 28, p['ws'], 'o')
    QF = 8
    O = QF + 32
    S = O + 64
    P = S + 64
    FB = P + 32
    NB = 8
    KAD = FB + 32
    NM = KAD + 4
    DK = NM + 8
    DV = DK + 2
    VAD = 247
    LLR = (3, 5)
    PQ = 248
    ONES = 252
    TA = (0, 1)
    TB = (6, 7)
    HOFF = QF
    QA = QF + 1
    DW = QF + 9
    k(f's_mov_b32 s62, {f32bits(LOG2E * 128 ** -0.5)}')
    k(f's_mov_b32 s63, {f32bits(-1.0)}')
    k('v_and_b32 v3, 15, v2')
    k('v_lshrrev_b32 v4, 4, v2')
    k('s_lshl_b32 s46, s44, 8')
    k('s_lshl_b32 s47, s45, 5')
    k('s_add_u32 s46, s46, s47')
    k('s_mul_i32 s47, s46, 1152')
    k(f'v_lshlrev_b32 v{HOFF}, 4, v2')
    k(f'v_add_u32 v{HOFF}, s47, v{HOFF}')
    k('v_xor_b32 v6, v3, v4')
    k('v_lshlrev_b32 v7, 8, v3')
    for t in range(4):
        k(f'v_xor_b32 v1, {4*t}, v6')
        k(f'v_lshl_add_u32 v{KAD+t}, v1, 4, v7')
    k(f'v_lshlrev_b32 v{QA}, 4, v2')
    k(f'v_add_u32 v{VAD}, 0x10000, v{QA}')
    k('v_lshrrev_b32 v5, 4, v2')
    k('v_and_b32 v6, 15, v2')
    k('s_lshl_b32 s47, s45, 3')
    for e in range(2):
        k(f'v_add_u32 v7, s47, v5')
        if e:
            k('v_add_u32 v7, 4, v7')
        k('v_and_b32 v1, 15, v7')
        k('v_xor_b32 v1, v1, v6')
        k('v_lshlrev_b32 v0, 8, v7')
        k(f'v_lshl_add_u32 v{DK+e}, v1, 4, v0')
    k('s_lshl_b32 s50, s45, 11')
    k(f'v_lshlrev_b32 v{DV}, 4, v2')
    k(f'v_add_u32 v{DV}, s50, v{DV}')
    k('s_mul_i32 s51, s43, 147456')
    k('s_lshl_b32 s52, s42, 19')
    k('s_mov_b32 s53, s52')
    k('s_add_u32 s57, s52, 0x80000')
    k('s_mov_b32 s59, 0x70000000')

    vm = Cnt(k, 'vmcnt', 63)
    lg = Cnt(k, 'lgkmcnt', 15)

    def st(i):
        if stamp:
            k(f's_memtime s[{70+2*i}:{71+2*i}]')
    st(0)
    if stamp:
        k('s_memrealtime s[80:81]')

    def hreg(c, t, qb):
        return S + (c % 6) * 16 + 8 * t + 4 * qb

    def dma_k_parts(slot, tag):
        def a():
            k('s_cmp_ge_u32 s52, s57')
            k('s_cselect_b32 s58, s59, s52')
            k(f's_add_u32 m0, s50, {slot*16384}')
            k(f'buffer_load_dwordx4 v{DK}, s[12:15], s58 offen lds')
            vm.add(tag, 1)
        def b():
            k(f's_add_u32 m0, s50, {slot*16384+1024}')
            k(f'buffer_load_dwordx4 v{DK+1}, s[12:15], s58 offen lds')
            k('s_add_u32 s52, s52, 16384')
            vm.add(tag, 1)
        return [a, b]

    def dma_v_parts(slot, tag):
        def a():
            k('s_cmp_ge_u32 s53, s57')
            k('s_cselect_b32 s55, s59, s53')
            k(f's_add_u32 m0, s50, {65536+slot*16384}')
            k(f'buffer_load_dwordx4 v{DV}, s[16:19], s55 offen lds')
            vm.add(tag, 1)
        def b():
            k(f's_add_u32 m0, s50, {65536+slot*16384}')
            k(f'buffer_load_dwordx4 v{DV}, s[16:19], s55 offen offset:1024 lds')
            k('s_add_u32 s53, s53, 16384')
            vm.add(tag, 1)
        return [a, b]

    def load_h_parts(c):
        out = []
        for t in range(2):
            for qb in range(2):
                def f(t=t, qb=qb):
                    r = hreg(c, t, qb)
                    k(f's_mov_b32 s54, {2048*c + 18432*qb}')
                    k(f'buffer_load_dwordx4 v[{r}:{r+3}], v{HOFF}, s[24:27], s54 offen offset:{1024*t}')
                    vm.add(('w', c), 1)
                out.append(f)
        return out

    def dma_wq_parts(c):
        def a():
            k(f's_add_u32 m0, s50, {65536 + ((c + 3) % 4) * 16384}')
            k(f'buffer_load_dwordx4 v{DV}, s[20:23], s51 offen lds')
            vm.add(('w', c), 1)
        def b():
            k(f's_add_u32 m0, s50, {65536 + ((c + 3) % 4) * 16384}')
            k(f'buffer_load_dwordx4 v{DV}, s[20:23], s51 offen offset:1024 lds')
            k(f's_add_u32 s51, s51, 16384')
            vm.add(('w', c), 1)
        return [a, b]

    for c in range(3):
        for f in dma_wq_parts(c) + load_h_parts(c):
            f()
    if preps:
        k(f's_load_dwordx2 s[64:65], s[0:1], {KA["wo"]}')
        k(f's_load_dwordx2 s[66:67], s[0:1], {KA["w_in"]}')
        k(f's_load_dwordx2 s[68:69], s[0:1], {KA["w_out"]}')
        k(f's_load_dwordx2 s[70:71], s[0:1], {KA["w_sp"]}')
        PO = WS['wof'][0] - 16384
        k(f's_add_u32 s80, s10, {hex(PO)}')
        k('s_addc_u32 s81, s11, 0')
        k(f's_mov_b32 s82, {hex(WS["wspf"][0] + WS["wspf"][1] - PO)}')
        k('s_mov_b32 s83, 0x00020000')
        k('s_lshl_b32 s72, s2, 3')
        k('s_add_u32 s72, s72, s45')
        k('s_mov_b32 s79, 0x00020000')
        k('s_add_u32 s73, s50, 131072')
        k('s_waitcnt lgkmcnt(0)')
    for i in range(64):
        k(f'v_mov_b32 v{O+i}, 0')
    fbn = {'r': 0, 'u': 0}

    def rd_tr(areg, off, tag):
        b = FB + 4 * (fbn['r'] % NB); fbn['r'] += 1
        k(f'ds_read_b64_tr_b16 v[{b}:{b+1}], v{areg} offset:{off}')
        k(f'ds_read_b64_tr_b16 v[{b+2}:{b+3}], v{areg} offset:{off+4096}')
        lg.add(tag, 2)

    def rd_k(areg, off, tag):
        b = FB + 4 * (fbn['r'] % NB); fbn['r'] += 1
        k(f'ds_read_b128 v[{b}:{b+3}], v{areg} offset:{off}')
        lg.add(tag, 1)

    def use_frag(tag, nxt=None):
        if tag in lg.q:
            lg.wait(nxt if (nxt is not None and nxt in lg.q) else tag)
        b = FB + 4 * (fbn['u'] % NB); fbn['u'] += 1
        return b

    def oreg(Db, qb):
        return O + 8 * Db + 4 * qb

    AH = 6
    kvpro = {6: dma_k_parts(0, ('k', 0)) + dma_k_parts(1, ('g', -3)) + dma_v_parts(0, ('g', -3)),
             7: dma_k_parts(2, ('g', -2)) + dma_v_parts(1, ('g', -2)),
             8: dma_k_parts(3, ('g', -1)) + dma_v_parts(2, ('g', -1))}
    for c in range(9):
        vm.wait(('w', c))
        k('s_barrier')
        pend = []
        if c + 3 < 9:
            pend = dma_wq_parts(c + 3) + load_h_parts(c + 3)
        else:
            pend = kvpro[c]
        cb = ((c + 3) % 4) * 16384
        seq = [(t, Db) for t in range(2) for Db in range(8)]
        for i in range(AH):
            t, Db = seq[i]
            rd_k(VAD, cb + (t * 8 + Db) * 1024, (c, t, Db))
        for i, (t, Db) in enumerate(seq):
            if i + AH < 16:
                t2, D2 = seq[i + AH]
                rd_k(VAD, cb + (t2 * 8 + D2) * 1024, (c, t2, D2))
            b = use_frag((c, t, Db))
            for qb in range(2):
                hr = hreg(c, t, qb)
                d = oreg(Db, qb)
                k(f'{MF} v[{d}:{d+3}], v[{b}:{b+3}], v[{hr}:{hr+3}], v[{d}:{d+3}]')
            if pend and i % 2 == 1:
                pend.pop(0)()
        assert not pend
    k('v_cmp_gt_u32 vcc, 32, v2')
    for qb in range(2):
        for tq in range(4):
            a, b = oreg(2 * tq, qb), oreg(2 * tq + 1, qb)
            for i in range(4):
                k(f'v_mul_f32 v{a+i}, s62, v{a+i}')
                k(f'v_mul_f32 v{b+i}, s62, v{b+i}')
            q = QF + 16 * qb + 4 * tq
            k(f'v_cvt_pk_bf16_f32 v{q}, v{a}, v{a+1}')
            k(f'v_cvt_pk_bf16_f32 v{q+1}, v{a+2}, v{a+3}')
            k(f'v_cvt_pk_bf16_f32 v{q+2}, v{b}, v{b+1}')
            k(f'v_cvt_pk_bf16_f32 v{q+3}, v{b+2}, v{b+3}')
    for i in range(64):
        k(f'v_mov_b32 v{O+i}, 0')
    for i in range(16):
        k(f'v_mov_b32 v{P+16+i}, 0')
    for qb in range(2):
        for i in range(4):
            k(f'v_mov_b32 v{NM+4*qb+i}, 0')
        k(f'v_mov_b32 v{LLR[qb]}, 0')
    k(f's_mov_b32 s61, {f32bits(-3.0e38)}')
    for i in range(4):
        k(f'v_mov_b32 v{ONES+i}, 0x3f803f80')

    def sreg(j, kb, qb):
        return S + 32 * (j & 1) + 8 * kb + 4 * qb

    def preg(j, u, qb):
        return P + 16 * (j & 1) + 8 * u + 4 * qb

    def qk_ops(j):
        slot = j % 4
        ops = []
        for kb in range(4):
            for t in range(4):
                tag = ('qk', j, kb, t)
                rd = (lambda t=t, kb=kb, tag=tag: rd_k(KAD + t, slot * 16384 + kb * 4096, tag))
                mfs = []
                for qb in range(2):
                    d = sreg(j, kb, qb)
                    c = f'v[{NM+4*qb}:{NM+4*qb+3}]' if t == 0 else f'v[{d}:{d+3}]'
                    q = QF + 16 * qb + 4 * t
                    mfs.append(lambda b, d=d, c=c, q=q: f'{MF} v[{d}:{d+3}], v[{b}:{b+3}], v[{q}:{q+3}], {c}')
                ops.append((rd, mfs, tag))
        return ops

    def pv_ops(j):
        slot = j % 4
        ops = []
        for u in range(2):
            for Db in range(8):
                tag = ('pv', j, u, Db)
                rd = (lambda u=u, Db=Db, tag=tag: rd_k(VAD, slot * 16384 + (u * 8 + Db) * 1024, tag))
                mfs = []
                for qb in range(2):
                    d = oreg(Db, qb)
                    pr = preg(j, u, qb)
                    mfs.append(lambda b, d=d, pr=pr: f'{MF} v[{d}:{d+3}], v[{b}:{b+3}], v[{pr}:{pr+3}], v[{d}:{d+3}]')
                ops.append((rd, mfs, tag))
        return ops

    def sm_pair(a0, a1, pd, tt, qb, first):
        e0, e1 = tt
        s = [f'v_exp_f32 v{e0}, v{a0}',
             f'v_exp_f32 v{e1}, v{a1}',
             f'v_cvt_pk_bf16_f32 v{pd}, v{e0}, v{e1}']
        return s

    def sm_stream(j):
        out = []
        for kb in range(4):
            for hh in range(2):
                prs = []
                for qb in range(2):
                    a = sreg(j, kb, qb) + 2 * hh
                    pd = preg(j, kb >> 1, qb) + 2 * (kb & 1) + hh
                    prs.append(sm_pair(a, a + 1, pd, TA if qb == 0 else TB, qb, kb == 0 and hh == 0))
                x, y = prs
                merged = x[:2] + y[:2]
                x = x[2:]
                y = y[2:]
                x, y = y, x
                while x or y:
                    if y: merged.append(y.pop(0))
                    if x: merged.append(x.pop(0))
                out += merged
        return out

    slow_blocks = []

    def lsum(j, u):
        for qb in range(2):
            d = preg(j + 1, 0, qb)
            pr = preg(j, u, qb)
            c = '0' if u == 0 else f'v[{d}:{d+3}]'
            k(f'{MF} v[{d}:{d+3}], v[{ONES}:{ONES+3}], v[{pr}:{pr+3}], {c}')

    def check(j):
        sl = k.label('slow'); rt = k.label('ret')
        t0, t1 = preg(j + 1, 0, 0), preg(j + 1, 0, 1)
        k(f'v_add_f32 v4, v{t0}, v{t1}')
        k(f'v_cmp_nge_f32 vcc, s63, v4')
        k(f's_cbranch_vccnz {sl}')
        k(f'{rt}:')
        k(f'v_add_f32 v{LLR[0]}, v{LLR[0]}, v{t0}')
        k(f'v_add_f32 v{LLR[1]}, v{LLR[1]}, v{t1}')
        slow_blocks.append((sl, rt, j & 1))

    def side_issue():
        la = k.label('sa'); lj = k.label('sj'); l1 = k.label('s1'); l2 = k.label('s2'); lb = k.label('sb')
        k('s_waitcnt lgkmcnt(0)') if False else None
        k('s_cmp_lt_u32 s72, 4096')
        k(f's_cbranch_scc1 {la}')
        k('s_sub_u32 s86, s72, 4096')
        k('s_cmp_lt_u32 s86, 2304')
        k(f's_cbranch_scc1 {l1}')
        k('s_cmp_lt_u32 s86, 4896')
        k(f's_cbranch_scc1 {l2}')
        k('s_sub_u32 s86, s86, 4896')
        k('s_mov_b32 s76, s68'); k('s_mov_b32 s77, s69'); k(f's_mov_b32 s78, {SIZES["w_out"]}')
        k('s_movk_i32 s85, 1152'); k('s_movk_i32 s87, 18'); k(f's_mov_b32 s88, {(1 << 32) // 18 + 1}')
        k(f's_mov_b32 s89, {WS["woutf"][0] - PO}')
        k('s_cmp_lt_u32 s86, 1296')
        k('s_cselect_b32 s89, s89, 0x70000000')
        k(f's_branch {lb}')
        k(f'{l1}:')
        k('s_mov_b32 s76, s64'); k('s_mov_b32 s77, s65'); k(f's_mov_b32 s78, {SIZES["wo"]}')
        k('s_movk_i32 s85, 1152'); k('s_movk_i32 s87, 18'); k(f's_mov_b32 s88, {(1 << 32) // 18 + 1}')
        k(f's_mov_b32 s89, {WS["wof"][0] - PO}')
        k(f's_branch {lb}')
        k(f'{l2}:')
        k('s_sub_u32 s86, s86, 2304')
        k('s_mov_b32 s76, s66'); k('s_mov_b32 s77, s67'); k(f's_mov_b32 s78, {SIZES["w_in"]}')
        k('s_movk_i32 s85, 9216'); k('s_movk_i32 s87, 144'); k(f's_mov_b32 s88, {(1 << 32) // 144 + 1}')
        k(f's_mov_b32 s89, {WS["winf"][0] - PO}')
        k(f'{lb}:')
        k('s_mul_hi_u32 s90, s86, s88')
        k('s_mul_i32 s91, s90, s87')
        k('s_sub_u32 s91, s86, s91')
        k('s_mul_i32 s74, s90, s85')
        k('s_lshl_b32 s74, s74, 5')
        k('s_lshl_b32 s91, s91, 6')
        k('s_add_u32 s74, s74, s91')
        k('s_lshl_b32 s75, s86, 11')
        k('s_add_u32 s75, s75, s89')
        k('s_mov_b32 s84, 0')
        k(f'v_lshrrev_b32 v{PQ}, 2, v2')
        k(f'v_mul_lo_u32 v{PQ}, v{PQ}, s85')
        k(f'v_and_b32 v{PQ+1}, 3, v2')
        k(f'v_lshl_add_u32 v{PQ}, v{PQ+1}, 4, v{PQ}')
        k('s_lshl_b32 s85, s85, 4')
        k(f's_branch {lj}')
        k(f'{la}:')
        k('s_mov_b32 s76, s70'); k('s_mov_b32 s77, s71'); k(f's_mov_b32 s78, {SIZES["w_sp"]}')
        k('s_lshr_b32 s90, s72, 5')
        k('s_lshl_b32 s74, s90, 16')
        k('s_and_b32 s91, s72, 31')
        k('s_lshl_b32 s91, s91, 7')
        k('s_add_u32 s74, s74, s91')
        k('s_lshl_b32 s75, s72, 11')
        k(f's_add_u32 s75, s75, {WS["wspf"][0] - PO}')
        k('s_mov_b32 s84, 1')
        k(f'v_lshrrev_b32 v{PQ}, 3, v2')
        k(f'v_lshlrev_b32 v{PQ}, 12, v{PQ}')
        k(f'v_and_b32 v{PQ+1}, 7, v2')
        k(f'v_lshl_add_u32 v{PQ}, v{PQ+1}, 4, v{PQ}')
        k('s_mov_b32 s85, 32768')
        k(f'{lj}:')
        k('s_sub_u32 s75, s75, s50')
        k('s_mov_b32 m0, s73')
        k(f'buffer_load_dwordx4 v{PQ}, s[76:79], s74 offen lds')
        k('s_add_u32 s74, s74, s85')
        k('s_add_u32 m0, s73, 1024')
        k(f'buffer_load_dwordx4 v{PQ}, s[76:79], s74 offen lds')
        k('s_add_u32 s72, s72, 2048')
        vm.add(('side', 0), 2)

    def side_read(f, j):
        la = k.label('ra'); lj = k.label('rj')
        k('s_cmp_eq_u32 s84, 1')
        k(f's_cbranch_scc1 {la}')
        k('v_lshrrev_b32 v4, 2, v2')
        k('v_lshlrev_b32 v4, 6, v4')
        k(f'v_and_b32 v{PQ}, 3, v2')
        k(f'v_lshl_add_u32 v4, v{PQ}, 3, v4')
        k('v_add_u32 v4, s73, v4')
        k(f'ds_read_b64_tr_b16 v[{PQ}:{PQ+1}], v4 offset:{32*f}')
        k(f'ds_read_b64_tr_b16 v[{PQ+2}:{PQ+3}], v4 offset:{32*f+1024}')
        k(f's_branch {lj}')
        k(f'{la}:')
        k('v_and_b32 v4, 15, v2')
        k('v_lshlrev_b32 v4, 7, v4')
        k(f'v_lshrrev_b32 v{PQ}, 4, v2')
        k(f'v_lshl_add_u32 v4, v{PQ}, 3, v4')
        k('v_add_u32 v4, s73, v4')
        k(f'ds_read_b64 v[{PQ}:{PQ+1}], v4 offset:{64*f}')
        k(f'ds_read_b64 v[{PQ+2}:{PQ+3}], v4 offset:{64*f+32}')
        k(f'{lj}:')
        lg.add(('sd', j, f, 0), 2)

    def side_store(f, j):
        lg.wait(('sd', j, f, 0))
        k(f'buffer_store_dwordx4 v[{PQ}:{PQ+3}], v{DV}, s[80:83], s75 offen offset:{1024*f} sc0 sc1')
        vm.add(('sst', j), 1)

    def iteration(j):
        dm = dma_k_parts((j + 4) % 4, ('g', j)) + dma_v_parts((j + 3) % 4, ('g', j))
        ops = pv_ops(j - 1) + qk_ops(j + 1)
        allops = ops + pv_ops(j)
        valu = sm_stream(j)
        nm = len(ops)
        per = len(valu) / (2 * SMEND)
        acc = 0.0
        vi = 0
        nrd = AH
        for i, (rd, mfs, tag) in enumerate(ops):
            if i < 8:
                want = 7 + i
            elif i < BAR:
                want = 16
            else:
                want = i + AH + 1
            if i == BAR:
                k('s_waitcnt lgkmcnt(0)')
                lg.q = []
                vm.wait(('g', j - 3))
                k('s_barrier')
            b = None
            for mf in mfs:
                acc += per
                n = min(int(acc + 1e-6), len(valu)) - vi
                for _ in range(n):
                    k(valu[vi]); vi += 1
                if b is None:
                    while nrd < want:
                        allops[nrd][0](); nrd += 1
                    b = use_frag(tag, allops[i + 1][2])
                k(mf(b))
            if dm and i >= BAR + DSTART and (i - BAR - DSTART) % DSTEP == 0:
                dm.pop(0)()
            if preps and j % 4 == 0 and i == 2:
                side_issue()
            if preps and j % 4 == 3:
                if i == BAR + 2: side_read(0, j)
                if i == BAR + 6: side_store(0, j)
                if i == BAR + 9: side_read(1, j)
                if i == BAR + 13: side_store(1, j)
            if i == 17:
                assert vi >= len(valu) // 2
                lsum(j, 0)
            if i == SMEND:
                assert vi == len(valu)
                lsum(j, 1)
        assert not dm and nrd == nm + AH, (nrd, dm)
        while vi < len(valu):
            k(valu[vi]); vi += 1
        check(j)

    st(1)
    vm.wait(('k', 0))
    k('s_barrier')
    ops = qk_ops(0) + pv_ops(-1)
    for i in range(AH):
        ops[i][0]()
    for i, (rd, mfs, tag) in enumerate(ops[:16]):
        ops[i + AH][0]()
        b = use_frag(tag)
        for mf in mfs:
            k(mf(b))
    st(2)
    if prio:
        pl = k.label('prio')
        k('s_cmp_lt_u32 s45, 4')
        k(f's_cbranch_scc1 {pl}')
        k('s_setprio 1')
        k(f'{pl}:')
    L = k.label('loop')
    k('s_mov_b32 s56, 8')
    vq0 = list(vm.q)
    lq0 = list(lg.q)
    f0 = fbn['r'] % NB
    k(f'{L}:')
    for j in range(0, 4):
        iteration(j)
    assert len(vm.q) >= len(vq0), (vm.q, vq0)
    print('attn vm after body', vm.q)
    assert [(t[0], t[1] - 4) + t[2:] for t in lg.q] == lq0
    assert fbn['r'] % NB == f0
    k('s_sub_u32 s56, s56, 1')
    k('s_cmp_lg_u32 s56, 0')
    k(f's_cbranch_scc1 {L}')
    k.check_backedge(L)
    st(3)
    ops = pv_ops(3)
    for i, (rd, mfs, tag) in enumerate(ops):
        if i + AH < 16:
            ops[i + AH][0]()
        b = use_frag(tag)
        for mf in mfs:
            k(mf(b))
    for qb in range(2):
        l = LLR[qb]
        k(f'v_rcp_f32 v1, v{l}')
        k(f'v_fma_f32 v4, -v{l}, v1, 1.0')
        k(f'v_fma_f32 v{l}, v4, v1, v1')
    k('v_lshlrev_b32 v6, 4, v2')
    k('s_lshl_b32 s51, s46, 13')
    k('s_lshl_b32 s54, s43, 12')
    k('s_add_u32 s51, s51, s54')
    for qb in range(2):
        for t in range(4):
            tr = S + 4 * (4 * qb + t)
            for b in range(2):
                o = oreg(2 * t + b, qb)
                for i in range(4):
                    k(f'v_mul_f32 v{o+i}, v{o+i}, v{LLR[qb]}')
                k(f'v_cvt_pk_bf16_f32 v{tr+2*b}, v{o}, v{o+1}')
                k(f'v_cvt_pk_bf16_f32 v{tr+2*b+1}, v{o+2}, v{o+3}')
            k(f'buffer_store_dwordx4 v[{tr}:{tr+3}], v6, s[28:31], s51 offen offset:{1024*t} sc0 sc1')
        k('s_add_u32 s51, s51, 131072')
    k('s_waitcnt vmcnt(0)')
    if stamp:
        st(4)
        k('s_memrealtime s[82:83]')
        k('s_waitcnt lgkmcnt(0)')
        srd(k, 84, p['ws'], 'q')
        k('s_lshl_b32 s88, s2, 3')
        k('s_add_u32 s88, s88, s45')
        k('s_lshl_b32 s88, s88, 5')
        for i in range(1, 5):
            k(f's_sub_u32 s{70+2*i}, s{70+2*i}, s70')
        k('s_sub_u32 s82, s82, s80')
        for i, sreg_ in enumerate((72, 74, 76, 78, 82)):
            k(f'v_mov_b32 v1, s{sreg_}')
            k(f'v_mov_b32 v3, {4*i}')
            k(f'buffer_store_dword v1, v3, s[84:87], s88 offen')
    k(f'{done}:')
    k('s_endpgm')
    for (sl, rt, par) in slow_blocks:
        k(f'{sl}:')
        k.fence(16)
        for qb in range(2):
            regs = [sreg(par, kb, qb) + i for kb in range(4) for i in range(4)]
            k(f'v_max3_f32 v1, v{regs[0]}, v{regs[1]}, v{regs[2]}')
            for i in range(3, 15, 2):
                k(f'v_max3_f32 v1, v1, v{regs[i]}, v{regs[i+1]}')
            k(f'v_max_f32 v1, v1, v{regs[15]}')
            k('ds_swizzle_b32 v0, v1 offset:0x401F')
            k('s_waitcnt lgkmcnt(0)')
            k('v_max_f32 v1, v1, v0')
            k('v_mov_b32 v0, v1')
            k('v_permlane32_swap_b32 v0, v1')
            k('v_max_f32 v1, v1, v0')
            k('v_max_f32 v1, s61, v1')
            k(f'v_add_f32 v1, {f32bits(32.0)}, v1')
            for i in range(4):
                k(f'v_sub_f32 v{NM+4*qb+i}, v{NM+4*qb+i}, v1')
            for kb in range(4):
                for i in range(4):
                    r_ = sreg(par + 1, kb, qb) + i
                    k(f'v_sub_f32 v{r_}, v{r_}, v1')
            k('v_max_f32 v0, 0, v1')
            k('v_exp_f32 v0, -v0')
            k(f'v_mul_f32 v{LLR[qb]}, v{LLR[qb]}, v0')
            for Db in range(8):
                for i in range(4):
                    k(f'v_mul_f32 v{oreg(Db, qb)+i}, v{oreg(Db, qb)+i}, v0')
            LSq = preg(par + 1, 0, qb)
            k(f'v_mov_b32 v{LSq}, 0')
            for kb in range(4):
                for hh in range(2):
                    a = sreg(par, kb, qb) + 2 * hh
                    pd = preg(par, kb >> 1, qb) + 2 * (kb & 1) + hh
                    k(f'v_sub_f32 v4, v{a}, v1')
                    k(f'v_sub_f32 v6, v{a+1}, v1')
                    k('v_exp_f32 v4, v4')
                    k('v_exp_f32 v6, v6')
                    k(f'v_add_f32 v{LSq}, v{LSq}, v4')
                    k(f'v_add_f32 v{LSq}, v{LSq}, v6')
                    k(f'v_cvt_pk_bf16_f32 v{pd}, v4, v6')
            k(f'ds_swizzle_b32 v0, v{LSq} offset:0x401F')
            k('s_waitcnt lgkmcnt(0)')
            k(f'v_add_f32 v{LSq}, v{LSq}, v0')
            k(f'v_mov_b32 v0, v{LSq}')
            k(f'v_permlane32_swap_b32 v0, v{LSq}')
            k(f'v_add_f32 v{LSq}, v{LSq}, v0')
        k(f's_mov_b32 s61, {f32bits(-32.0)}')
        k(f's_mov_b32 s63, {f32bits(2.0**80)}')
        k.fence(4)
        k(f's_branch {rt}')
    return k, (256, 512, 147456)
```

```python
from common import *
from attn import Cnt
import math

LOG2E = 1.4426950408889634
MF = 'v_mfma_f32_16x16x32_bf16'
SC = 'sc0 sc1'


def k_g3n(stamp=False):
    k = Kernel('g3_kernel')
    R = 4
    STAGE = 36864
    nsteps = 9
    ntg = 288
    lda = 18432
    done = k.label('done')
    k('s_cmp_ge_u32 s2, 256')
    k(f's_cbranch_scc1 {done}')
    p = load_ptrs(k, ['ws'], 4)
    k('s_and_b32 s40, s2, 7')
    k('s_lshr_b32 s41, s2, 3')
    k('s_lshr_b32 s42, s40, 1')
    k('s_lshl_b32 s42, s42, 2')
    k('s_and_b32 s43, s41, 3')
    k('s_add_u32 s42, s42, s43')
    k('s_and_b32 s43, s40, 1')
    k('s_lshl_b32 s43, s43, 3')
    k('s_lshr_b32 s44, s41, 2')
    k('s_add_u32 s43, s43, s44')
    k('v_lshrrev_b32 v1, 6, v0')
    k('v_and_b32 v2, 63, v0')
    k('v_readfirstlane_b32 s45, v1')
    k('v_lshlrev_b32 v8, 4, v2')
    k('s_lshr_b32 s46, s45, 1')
    k('s_and_b32 s47, s45, 1')
    k('s_lshl_b32 s48, s42, 7')
    k('s_lshl_b32 s49, s46, 5')
    k('s_add_u32 s48, s48, s49')
    LN = 8
    AOFF = 9
    TRA = 11
    BF = 16
    NB = 6
    AF = BF + 4 * NB
    k('s_lshr_b32 s50, s48, 4')
    k(f's_mul_i32 s50, s50, {lda}')
    k(f'v_add_u32 v{AOFF}, s50, v{LN}')
    k(f'v_add_u32 v{AOFF+1}, {lda}, v{AOFF}')
    k('s_mov_b32 s51, 0')
    k('s_lshr_b32 s60, s45, 2')
    k('s_and_b32 s61, s45, 3')
    k(f's_mul_i32 s52, s60, {ntg*1024}')
    k('s_mul_i32 s53, s43, 18432')
    k('s_add_u32 s52, s52, s53')
    k('s_mul_i32 s53, s61, 4608')
    k('s_add_u32 s52, s52, s53')
    k('s_mul_i32 s55, s60, 18432')
    k('s_add_u32 s55, s55, s53')
    k('s_mul_i32 s53, s47, 9216')
    k(f'v_add_u32 v{TRA}, s53, v{LN}')
    k(f'v_add_u32 v{TRA+1}, 65536, v{TRA}')
    k(f'v_add_u32 v{TRA+2}, 131072, v{TRA}')
    k('s_mov_b32 s62, -1')
    k('s_mov_b32 s63, 0xffff')
    k('s_waitcnt lgkmcnt(0)')
    srd(k, 12, p['ws'], 'h2')
    srd(k, 16, p['ws'], 'winf')
    vm = Cnt(k, 'vmcnt', 63)
    lg = Cnt(k, 'lgkmcnt', 15)

    def group_parts(st, tag):
        out = []
        for ks in range(2):
            for mt in range(2):
                def f(mt=mt, ks=ks):
                    r = AF + (st * 4 + ks * 2 + mt) * 4
                    k(f'buffer_load_dwordx4 v[{r}:{r+3}], v{AOFF+mt}, s[12:15], s51 offen offset:{1024*ks}')
                    if mt == 1 and ks == 1:
                        k('s_add_u32 s51, s51, 2048')
                    vm.add(tag, 1)
                out.append(f)
        for j in range(6):
            def f(j=j):
                if j % 3 == 0:
                    k(f's_add_u32 m0, s55, {st*STAGE + 2304*(j//3)}')
                    if j:
                        k('s_add_u32 s52, s52, 2304')
                k('s_mov_b64 exec, s[62:63]')
                k(f'buffer_load_dwordx4 v{LN}, s[16:19], s52 offen offset:{768*(j%3)} lds')
                k('s_mov_b64 exec, -1')
                if j == 5:
                    k(f's_add_u32 s52, s52, {2*ntg*1024 - 2304}')
                vm.add(tag, 1)
            out.append(f)
        return out

    for st_ in range(3):
        for f in group_parts(st_, ('g', st_)):
            f()
    for i in range(72):
        k(f'v_accvgpr_write_b32 a{i}, 0')
    state = {'r': 0, 'u': 0}

    def read_frag(st, f, tag):
        b = BF + 4 * (state['r'] % NB)
        state['r'] += 1
        off = st * STAGE + (f // 9) * 18432 + (f % 9) * 1024
        k(f'ds_read_b128 v[{b}:{b+3}], v{TRA + off // 65536} offset:{off % 65536}')
        lg.add(tag, 1)
    AHEAD = NB - 1
    BARF = 6

    vm.wait(('g', 0))
    k('s_barrier')
    for f in range(AHEAD):
        read_frag(0, f, ('f', 0, f))
    for s in range(nsteps):
        st = s % R
        last = s == nsteps - 1
        pend = []
        for f in range(18):
            if f == BARF and not last:
                vm.wait(('g', s + 1))
                k('s_barrier')
                if s + 3 <= nsteps - 1:
                    pend = group_parts((st + 3) % R, ('g', s + 3))
            nf = f + AHEAD
            if nf < 18:
                read_frag(st, nf, ('f', s, nf))
            elif not last:
                read_frag((st + 1) % R, nf - 18, ('f', s + 1, nf - 18))
            lg.wait(('f', s, f))
            b = BF + 4 * (state['u'] % NB)
            state['u'] += 1
            for mt in range(2):
                a = AF + (st * 4 + (f // 9) * 2 + mt) * 4
                d = (mt * 9 + f % 9) * 4
                k(f'{MF} a[{d}:{d+3}], v[{b}:{b+3}], v[{a}:{a+3}], a[{d}:{d+3}]')
            if pend:
                pend.pop(0)()
        assert not pend
    srd(k, 20, p['ws'], 'z')
    c0 = -2.0 * LOG2E * math.sqrt(2.0 / math.pi)
    k(f's_mov_b32 s58, {f32bits(c0)}')
    k(f's_mov_b32 s59, {f32bits(c0*0.044715)}')
    k('v_mov_b32 v7, s58')
    k('s_lshr_b32 s57, s48, 5')
    k(f's_mul_i32 s57, s57, {288*1024}')
    k('s_mul_i32 s64, s43, 18432')
    k('s_add_u32 s57, s57, s64')
    k('s_mul_i32 s64, s47, 9216')
    k('s_add_u32 s57, s57, s64')
    k.fence(8)
    for nt in range(9):
        t = BF + 16 * (nt % 4)
        w = t + 8
        for mt in range(2):
            for r in range(4):
                k(f'v_accvgpr_read_b32 v{t+4*mt+r}, a{(mt*9+nt)*4+r}')
        for r in range(8):
            k(f'v_mul_f32 v{w+r}, v{t+r}, v{t+r}')
        for r in range(8):
            k(f'v_fma_f32 v{w+r}, v{w+r}, s59, v7')
        for r in range(8):
            k(f'v_mul_f32 v{w+r}, v{w+r}, v{t+r}')
        for r in range(8):
            k(f'v_exp_f32 v{w+r}, v{w+r}')
        for r in range(8):
            k(f'v_add_f32 v{w+r}, 1.0, v{w+r}')
        for r in range(8):
            k(f'v_rcp_f32 v{w+r}, v{w+r}')
        for r in range(8):
            k(f'v_mul_f32 v{t+r}, v{t+r}, v{w+r}')
        for r in range(4):
            k(f'v_cvt_pk_bf16_f32 v{t+r}, v{t+2*r}, v{t+2*r+1}')
        if nt in (4, 8):
            k('s_add_u32 s57, s57, 4096')
        k(f'buffer_store_dwordx4 v[{t}:{t+3}], v{LN}, s[20:23], s57 offen offset:{1024*(nt%4)} {SC}')
    k(f'{done}:')
    k('s_endpgm')
    k.nacc = 72
    return k, (256, 512, R * STAGE)
```

```python
from common import *
from attn import Cnt
import math

LOG2E = 1.4426950408889634
MF = 'v_mfma_f32_16x16x32_bf16'
SC = 'sc0 sc1'


def k_gemm3(name, a_src, lda, b_src, ntg, nsteps, nsub, ntn, nsplit, epi, stamp=False, R=4, PD=None):
    PD = PD or R - 1
    assert 16 * ntn * nsplit == 256
    k = Kernel(name)
    MT = 2 * nsub
    NT = 9
    NDMA = 3 * nsub
    STAGE = 18432 * nsub
    done = k.label('done')

    def stp(i):
        if stamp:
            k(f's_memtime s[{70+2*i}:{71+2*i}]')
    stp(0)
    if stamp:
        k('s_memrealtime s[80:81]')
    k('s_cmp_ge_u32 s2, 256')
    k(f's_cbranch_scc1 {done}')
    names = ['ws'] + (['b_sp'] if epi == 'gate' else [])
    p = load_ptrs(k, names, 4)
    k('s_and_b32 s40, s2, 7')
    k('s_lshr_b32 s41, s2, 3')
    if nsplit == 1:
        k('s_lshr_b32 s42, s40, 1')
        k('s_lshl_b32 s42, s42, 2')
        k('s_and_b32 s43, s41, 3')
        k('s_add_u32 s42, s42, s43')
        k('s_and_b32 s43, s40, 1')
        k('s_lshl_b32 s43, s43, 3')
        k('s_lshr_b32 s44, s41, 2')
        k('s_add_u32 s43, s43, s44')
        k('s_mov_b32 s44, 0')
    else:
        k('s_and_b32 s44, s40, 3')
        k('s_lshr_b32 s42, s40, 2')
        k('s_lshl_b32 s42, s42, 3')
        k('s_and_b32 s43, s41, 7')
        k('s_add_u32 s42, s42, s43')
        k('s_lshr_b32 s43, s41, 3')
    k('v_lshrrev_b32 v1, 6, v0')
    k('v_and_b32 v2, 63, v0')
    k('v_readfirstlane_b32 s45, v1')
    k('v_lshlrev_b32 v8, 4, v2')
    k('s_lshr_b32 s60, s45, 2')
    k('s_and_b32 s61, s45, 3')
    if nsub == 1:
        k('s_lshl_b32 s46, s61, 5')
        k('s_mov_b32 s47, 0')
    else:
        k('s_lshr_b32 s46, s61, 1')
        k('s_lshl_b32 s46, s46, 6')
        k('s_and_b32 s47, s61, 1')
    k('s_lshl_b32 s48, s42, 7')
    k('s_add_u32 s48, s48, s46')
    k(f's_mul_i32 s49, s43, {144*nsub}')
    LN = 8
    AOFF = 9
    TRA = AOFF + MT
    NW = (R * STAGE + 65535) // 65536
    base = (TRA + NW + 3) // 4 * 4
    NB = 6 if nsub == 1 else 4
    BF = base
    AF = BF + 4 * NB
    k('s_lshr_b32 s50, s48, 4')
    k(f's_mul_i32 s50, s50, {lda}')
    k(f'v_add_u32 v{AOFF}, s50, v{LN}')
    for mt in range(1, MT):
        k(f'v_add_u32 v{AOFF+mt}, {lda*mt}, v{AOFF}')
    k(f's_mul_i32 s51, s44, {nsteps*2048}')
    k('s_lshl_b32 s53, s60, 10')
    k('s_add_u32 s51, s51, s53')
    k(f's_mul_i32 s52, s44, {2*nsteps}')
    k('s_add_u32 s52, s52, s60')
    k(f's_mul_i32 s52, s52, {ntg*1024}')
    k(f's_mul_i32 s53, s43, {9*nsub*1024}')
    k('s_add_u32 s52, s52, s53')
    k(f's_mul_i32 s53, s61, {NDMA*768}')
    k('s_add_u32 s52, s52, s53')
    k(f's_mul_i32 s55, s60, {9216*nsub}')
    k('s_add_u32 s55, s55, s53')
    k(f's_mul_i32 s53, s60, {9216*nsub}')
    k('s_mul_i32 s54, s47, 9216')
    k('s_add_u32 s53, s53, s54')
    k(f'v_add_u32 v{TRA}, s53, v{LN}')
    for w in range(1, NW):
        k(f'v_add_u32 v{TRA+w}, {65536*w}, v{TRA}')
    k('s_mov_b32 s62, -1')
    k('s_mov_b32 s63, 0xffff')
    k('s_waitcnt lgkmcnt(0)')
    srd(k, 12, p['ws'], a_src)
    srd(k, 16, p['ws'], b_src)
    vm = Cnt(k, 'vmcnt', 63)
    lg = Cnt(k, 'lgkmcnt', 15)

    def group_parts(st, tag):
        out = []
        for mt in range(MT):
            def f(mt=mt):
                r = AF + (st * MT + mt) * 4
                k(f'buffer_load_dwordx4 v[{r}:{r+3}], v{AOFF+mt}, s[12:15], s51 offen')
                if mt == MT - 1:
                    k('s_add_u32 s51, s51, 2048')
                vm.add(tag, 1)
            out.append(f)
        for j in range(NDMA):
            def f(j=j):
                if j % 3 == 0:
                    k(f's_add_u32 m0, s55, {st*STAGE + 2304*(j//3)}')
                    if j:
                        k('s_add_u32 s52, s52, 2304')
                k('s_mov_b64 exec, s[62:63]')
                k(f'buffer_load_dwordx4 v{LN}, s[16:19], s52 offen offset:{768*(j%3)} lds')
                k('s_mov_b64 exec, -1')
                if j == NDMA - 1:
                    k(f's_add_u32 s52, s52, {2*ntg*1024 - 2304*(nsub-1)}')
                vm.add(tag, 1)
            out.append(f)
        return out

    for st_ in range(min(PD, nsteps)):
        for f in group_parts(st_, ('g', st_)):
            f()
    for i in range(MT * NT * 4):
        k(f'v_accvgpr_write_b32 a{i}, 0')
    state = {'r': 0, 'u': 0}

    def read_frag(st, nt, tag):
        b = BF + 4 * (state['r'] % NB)
        state['r'] += 1
        off = st * STAGE + nt * 1024
        k(f'ds_read_b128 v[{b}:{b+3}], v{TRA + off // 65536} offset:{off % 65536}')
        lg.add(tag, 1)

    AHEAD = NB - 1
    BARF = 9 - AHEAD - 1

    def step(s, issue, last):
        st = s % R
        pend = []
        for f in range(9):
            if f == BARF and not last:
                vm.wait(('g', s + 1))
                k('s_barrier')
                if issue:
                    pend = group_parts((st + PD) % R, ('g', s + PD))
            nf = f + AHEAD
            if nf < 9:
                read_frag(st, nf, ('f', s, nf))
            elif not last:
                read_frag((st + 1) % R, nf - 9, ('f', s + 1, nf - 9))
            lg.wait(('f', s, f))
            b = BF + 4 * (state['u'] % NB)
            state['u'] += 1
            for mt in range(MT):
                a = AF + (st * MT + mt) * 4
                d = (mt * NT + f) * 4
                k(f'{MF} a[{d}:{d+3}], v[{b}:{b+3}], v[{a}:{a+3}], a[{d}:{d+3}]')
                if pend and (mt % 2 == 1):
                    pend.pop(0)()
        while pend:
            pend.pop(0)()

    vm.wait(('g', 0))
    k('s_barrier')
    stp(1)
    for f in range(AHEAD):
        read_frag(0, f, ('f', 0, f))
    if nsteps % R == 0 and nsteps >= 2 * R:
        nloop = nsteps // R - 1
        k(f's_mov_b32 s56, {nloop}')
        L = k.label('loop')
        vq0 = list(vm.q); lq0 = list(lg.q)
        k(f'{L}:')
        for u in range(R):
            step(u, True, False)
        assert [(a, b - R) for (a, b) in vm.q] == vq0
        assert [(a, b - R, c) for (a, b, c) in lg.q] == lq0
        k('s_sub_u32 s56, s56, 1')
        k('s_cmp_lg_u32 s56, 0')
        k(f's_cbranch_scc1 {L}')
        k.check_backedge(L)
        first = nsteps - R
        sh = first - R
        vm.q = [(a, b + sh) for (a, b) in vm.q]
        lg.q = [(a, b + sh, c) for (a, b, c) in lg.q]
    else:
        first = 0
    H = MT // 2
    k(f's_mul_i32 s64, s60, {16*H}')
    k('s_add_u32 s48, s48, s64')
    k('v_and_b32 v3, 15, v2')
    k('v_lshrrev_b32 v5, 4, v2')
    k('v_add_u32 v3, s48, v3')
    k('s_mul_i32 s53, s47, 144')
    k('s_add_u32 s53, s53, s49')
    k('v_lshl_add_u32 v5, v5, 2, s53')
    EX = AF + R * MT * 4
    if epi == 'gate':
        srd(k, 20, p['ws'], 'y')
        srd(k, 24, p['ws'], 'z')
        srd(k, 28, p['b_sp'], 'b_sp')
        k('s_lshr_b32 s65, s48, 5')
        k(f's_mul_i32 s65, s65, {288*1024}')
        k('s_lshl_b32 s64, s53, 6')
        k('s_add_u32 s65, s65, s64')
        k('s_lshr_b32 s64, s48, 1')
        k('s_and_b32 s64, s64, 8')
        k('s_add_u32 s65, s65, s64')
        k('s_add_u32 s66, s65, 4096')
        k('s_add_u32 s67, s65, 8192')
        k('v_lshlrev_b32 v7, 1, v3')
    for s in range(first, nsteps):
        step(s, s + PD <= nsteps - 1, s == nsteps - 1)
        if epi == 'gate' and s == nsteps - 2:
            k(f'buffer_load_ushort v{EX+18}, v7, s[28:31], 0 offen')
            for nt in range(NT):
                k(f'buffer_load_dwordx2 v[{EX+2*nt}:{EX+2*nt+1}], v{LN}, s[24:27], s{65+nt//4} offen offset:{1024*(nt%4)}')

    stp(2)
    k('s_barrier')
    k(f's_mul_i32 s64, s45, {H*9*1024}')
    k(f'v_add_u32 v1, s64, v{LN}')
    k('s_xor_b32 s64, s45, 4')
    k(f's_mul_i32 s64, s64, {H*9*1024}')
    k(f'v_add_u32 v4, s64, v{LN}')
    T = BF
    NTMP = (AF + R * MT * 4 - BF) // 4
    lab1 = k.label('hi'); lab2 = k.label('end')
    k('s_cmp_eq_u32 s60, 1')
    k(f's_cbranch_scc1 {lab1}')
    for grp in range(2):
        k.fence(8)
        send0 = H if grp == 0 else 0
        keep0 = 0 if grp == 0 else H
        n = 0
        for mt in range(H):
            for nt in range(NT):
                d = ((send0 + mt) * NT + nt) * 4
                t = T + 4 * (n % NTMP); n += 1
                for r in range(4):
                    k(f'v_accvgpr_read_b32 v{t+r}, a{d+r}')
                k(f'ds_write_b128 v1, v[{t}:{t+3}] offset:{(mt*NT+nt)*1024}')
        k('s_waitcnt lgkmcnt(0)')
        k('s_barrier')
        if grp == 0:
            stp(3)
        PR = T
        W = T + 36
        if epi in ('part2', 'part5'):
            srd(k, 20, p['ws'], 'p2')
            k(f's_mul_i32 s57, s44, {128*4*5120}')
            k('s_lshr_b32 s64, s48, 4')
            k('s_lshl_b32 s64, s64, 2')
            k('s_add_u32 s64, s64, s43')
            k('s_mul_i32 s64, s64, 5120')
            k('s_add_u32 s57, s57, s64')
        elif epi == 'gelu':
            srd(k, 20, p['ws'], 'z')
            k('v_mul_u32_u24 v6, 9216, v3')
            k('v_lshl_add_u32 v6, v5, 1, v6')
            k('s_mov_b32 s57, 0')
            c0 = -2.0 * LOG2E * math.sqrt(2.0 / math.pi)
            k(f's_mov_b32 s58, {f32bits(c0)}')
            k(f's_mov_b32 s59, {f32bits(c0*0.044715)}')
            k('v_mov_b32 v7, s58')
        else:
            k('s_lshr_b32 s57, s48, 4')
            k(f's_mul_i32 s57, s57, {72*1024}')
            k('s_lshr_b32 s58, s53, 4')
            k('s_waitcnt vmcnt(0)')
            k(f'v_lshlrev_b32 v{EX+18}, 16, v{EX+18}')
        if epi == 'gelu':
            k('s_lshr_b32 s57, s48, 5')
            k(f's_mul_i32 s57, s57, {288*1024}')
            k('s_lshl_b32 s64, s53, 6')
            k('s_add_u32 s57, s57, s64')
            for half in range(2):
                nts = list(range(0, 5)) if half == 0 else list(range(5, 9))
                for i, nt in enumerate(nts):
                    for mt in range(2):
                        r_ = PR + 8 * i + 4 * mt
                        k(f'ds_read_b128 v[{r_}:{r_+3}], v4 offset:{(mt*NT+nt)*1024}')
                for i, nt in enumerate(nts):
                    w = T + 40 + 8 * (i % 2)
                    t = PR + 8 * i
                    for mt in range(2):
                        d = ((keep0 + mt) * NT + nt) * 4
                        for r in range(4):
                            k(f'v_accvgpr_read_b32 v{w+4*mt+r}, a{d+r}')
                    k(f's_waitcnt lgkmcnt({2*(len(nts)-1-i)})')
                    for r in range(8):
                        k(f'v_add_f32 v{t+r}, v{t+r}, v{w+r}')
                    for r in range(8):
                        k(f'v_mul_f32 v{w+r}, v{t+r}, v{t+r}')
                    for r in range(8):
                        k(f'v_fma_f32 v{w+r}, v{w+r}, s59, v7')
                    for r in range(8):
                        k(f'v_mul_f32 v{w+r}, v{w+r}, v{t+r}')
                    for r in range(8):
                        k(f'v_exp_f32 v{w+r}, v{w+r}')
                    for r in range(8):
                        k(f'v_add_f32 v{w+r}, 1.0, v{w+r}')
                    for r in range(8):
                        k(f'v_rcp_f32 v{w+r}, v{w+r}')
                    for r in range(8):
                        k(f'v_mul_f32 v{t+r}, v{t+r}, v{w+r}')
                    for r in range(4):
                        k(f'v_cvt_pk_bf16_f32 v{t+r}, v{t+2*r}, v{t+2*r+1}')
                    if nt == 4:
                        k('s_add_u32 s57, s57, 4096')
                    if nt == 8:
                        k('s_add_u32 s57, s57, 4096')
                    k(f'buffer_store_dwordx4 v[{t}:{t+3}], v{LN}, s[20:23], s57 offen offset:{1024*(nt%4)} {SC}')
        for mt in range(H if epi != 'gelu' else 0):
            for nt in range(NT):
                k(f'ds_read_b128 v[{PR+4*nt}:{PR+4*nt+3}], v4 offset:{(mt*NT+nt)*1024}')
            for nt in range(NT):
                d = ((keep0 + mt) * NT + nt) * 4
                t = PR + 4 * nt
                w = W + 8 * (nt % 2)
                for r in range(4):
                    k(f'v_accvgpr_read_b32 v{w+r}, a{d+r}')
                k(f's_waitcnt lgkmcnt({8-nt})')
                for r in range(4):
                    k(f'v_add_f32 v{t+r}, v{t+r}, v{w+r}')
                if epi in ('part2', 'part5'):
                    q_ = PR + 8 * (nt // 2) + 2 * (nt % 2)
                    k(f'v_cvt_pk_bf16_f32 v{q_}, v{t}, v{t+1}')
                    k(f'v_cvt_pk_bf16_f32 v{q_+1}, v{t+2}, v{t+3}')
                    if nt % 2 == 1:
                        k(f'buffer_store_dwordx4 v[{q_-2}:{q_+1}], v{LN}, s[20:23], s57 offen offset:{1024*(nt//2)} {SC}')
                    elif nt == 8:
                        k('s_add_u32 s57, s57, 4096')
                        k(f'buffer_store_dwordx2 v[{q_}:{q_+1}], v{LN}, s[20:23], s57 offen {SC}')
                elif epi == 'gelu':
                    rbf2(k, t, t + 1, t, t + 1, w)
                    rbf2(k, t + 2, t + 3, t + 2, t + 3, w + 1)
                    for r in range(4):
                        k(f'v_mul_f32 v{w+r}, v{t+r}, v{t+r}')
                    for r in range(4):
                        k(f'v_fma_f32 v{w+r}, v{w+r}, s59, v7')
                    for r in range(4):
                        k(f'v_mul_f32 v{w+r}, v{w+r}, v{t+r}')
                    for r in range(4):
                        k(f'v_exp_f32 v{w+r}, v{w+r}')
                    for r in range(4):
                        k(f'v_add_f32 v{w+r}, 1.0, v{w+r}')
                    for r in range(4):
                        k(f'v_rcp_f32 v{w+r}, v{w+r}')
                    for r in range(4):
                        k(f'v_mul_f32 v{t+r}, v{t+r}, v{w+r}')
                    k(f'v_cvt_pk_bf16_f32 v{t}, v{t}, v{t+1}')
                    k(f'v_cvt_pk_bf16_f32 v{t+1}, v{t+2}, v{t+3}')
                    k(f'buffer_store_dwordx2 v[{t}:{t+1}], v6, s[20:23], s57 offen offset:{32*nt} {SC}')
                else:
                    z = EX + 2 * nt
                    for r in range(4):
                        k(f'v_add_f32 v{t+r}, v{t+r}, v{EX+18}')
                    k(f'v_lshlrev_b32 v{w}, 16, v{z}')
                    k(f'v_and_b32 v{w+1}, 0xffff0000, v{z}')
                    k(f'v_lshlrev_b32 v{w+2}, 16, v{z+1}')
                    k(f'v_and_b32 v{w+3}, 0xffff0000, v{z+1}')
                    for r in range(4):
                        k(f'v_mul_f32 v{t+r}, v{t+r}, v{w+r}')
                    k(f'v_cvt_pk_bf16_f32 v{t}, v{t}, v{t+1}')
                    k(f'v_cvt_pk_bf16_f32 v{t+1}, v{t+2}, v{t+3}')
                    k(f's_add_u32 s59, s58, {nt}')
                    k('s_lshr_b32 s64, s59, 1')
                    k('s_lshl_b32 s64, s64, 10')
                    k('s_and_b32 s59, s59, 1')
                    k('s_lshl_b32 s59, s59, 3')
                    k('s_add_u32 s59, s59, s64')
                    k('s_add_u32 s59, s59, s57')
                    k(f'buffer_store_dwordx2 v[{t}:{t+1}], v{LN}, s[20:23], s59 offen {SC}')
            if mt < H - 1:
                k(f's_add_u32 s57, s57, {16*(2304 if epi.startswith("part") else 9216)}')
        if grp == 0:
            k(f's_branch {lab2}')
            k(f'{lab1}:')
    k(f'{lab2}:')
    if stamp:
        k('s_waitcnt vmcnt(0)')
        stp(4)
        k('s_memrealtime s[82:83]')
        k('s_waitcnt lgkmcnt(0)')
        srd(k, 84, p['ws'], 'q')
        k('s_lshl_b32 s88, s2, 3')
        k('s_add_u32 s88, s88, s45')
        k('s_lshl_b32 s88, s88, 5')
        for i in range(1, 5):
            k(f's_sub_u32 s{70+2*i}, s{70+2*i}, s70')
        k('s_sub_u32 s82, s82, s80')
        for i, sreg_ in enumerate((72, 74, 76, 78, 82)):
            k(f'v_mov_b32 v1, s{sreg_}')
            k(f'v_mov_b32 v3, {4*i}')
            k(f'buffer_store_dword v1, v3, s[84:87], s88 offen')
    k(f'{done}:')
    k('s_endpgm')
    k.nacc = MT * NT * 4
    return k, (256, 512, max(R * STAGE, 8 * H * 9216))
```

```python
from common import *
from attn import Cnt
import math

MF = 'v_mfma_f32_16x16x32_bf16'
SC = 'sc0 sc1'


def k_gemm4(name, a_src, lda, b_src, ntg, nsteps, ntn, nsplit, epi):
    assert 16 * ntn * nsplit == 256
    k = Kernel(name)
    R = 4
    NT = 9
    STAGE = 18432
    done = k.label('done')
    k('s_cmp_ge_u32 s2, 256')
    k(f's_cbranch_scc1 {done}')
    names = ['ws'] + (['b_sp'] if epi == 'gate' else [])
    p = load_ptrs(k, names, 4)
    k('s_and_b32 s40, s2, 7')
    k('s_lshr_b32 s41, s2, 3')
    if nsplit == 1:
        k('s_lshr_b32 s42, s40, 1')
        k('s_lshl_b32 s42, s42, 2')
        k('s_and_b32 s43, s41, 3')
        k('s_add_u32 s42, s42, s43')
        k('s_and_b32 s43, s40, 1')
        k('s_lshl_b32 s43, s43, 3')
        k('s_lshr_b32 s44, s41, 2')
        k('s_add_u32 s43, s43, s44')
        k('s_mov_b32 s44, 0')
    else:
        k('s_and_b32 s44, s40, 3')
        k('s_lshr_b32 s42, s40, 2')
        k('s_lshl_b32 s42, s42, 3')
        k('s_and_b32 s43, s41, 7')
        k('s_add_u32 s42, s42, s43')
        k('s_lshr_b32 s43, s41, 3')
    k('v_lshrrev_b32 v1, 6, v0')
    k('v_and_b32 v2, 63, v0')
    k('v_readfirstlane_b32 s45, v1')
    k('v_lshlrev_b32 v8, 4, v2')
    k('s_lshr_b32 s60, s45, 2')
    k('s_and_b32 s61, s45, 3')
    k('s_lshl_b32 s46, s42, 3')
    k('s_lshl_b32 s47, s61, 1')
    k('s_add_u32 s46, s46, s47')
    k('s_add_u32 s48, s46, s60')
    k('s_xor_b32 s49, s48, 1')
    LN, AOFF, TRA = 8, 9, 11
    BF, NB = 16, 6
    AF = BF + 4 * NB
    EX = AF + 32
    k(f's_mul_i32 s50, s48, {lda}')
    k(f'v_add_u32 v{AOFF}, s50, v{LN}')
    k(f's_mul_i32 s50, s49, {lda}')
    k(f'v_add_u32 v{AOFF+1}, s50, v{LN}')
    k(f's_mul_i32 s51, s44, {nsteps*2048}')
    k('s_lshl_b32 s53, s60, 10')
    k('s_add_u32 s51, s51, s53')
    k(f's_add_u32 s65, s51, {nsteps*2048}')
    k(f's_mul_i32 s52, s44, {2*nsteps}')
    k('s_add_u32 s52, s52, s60')
    k(f's_mul_i32 s52, s52, {ntg*1024}')
    k('s_mul_i32 s53, s43, 9216')
    k('s_add_u32 s52, s52, s53')
    k('s_mul_i32 s53, s61, 2304')
    k('s_add_u32 s52, s52, s53')
    k('s_mul_i32 s55, s60, 9216')
    k(f'v_add_u32 v{TRA}, s55, v{LN}')
    k(f'v_add_u32 v{TRA+1}, 65536, v{TRA}')
    k('s_add_u32 s55, s55, s53')
    k('s_mov_b32 s62, -1')
    k('s_mov_b32 s63, 0xffff')
    k('s_mov_b32 s66, 0x70000000')
    k('s_waitcnt lgkmcnt(0)')
    srd(k, 12, p['ws'], a_src)
    srd(k, 16, p['ws'], b_src)
    vm = Cnt(k, 'vmcnt', 63)
    lg = Cnt(k, 'lgkmcnt', 15)

    def group_parts(st, tag, guard):
        out = []
        for mt in range(2):
            def f(mt=mt):
                r = AF + (st * 2 + mt) * 4
                if guard and mt == 0:
                    k('s_cmp_ge_u32 s51, s65')
                    k('s_cselect_b32 s67, s66, s51')
                    k('s_cselect_b32 s68, s66, s52')
                k(f'buffer_load_dwordx4 v[{r}:{r+3}], v{AOFF+mt}, s[12:15], s{67 if guard else 51} offen')
                if mt == 1:
                    k('s_add_u32 s51, s51, 2048')
                vm.add(tag, 1)
            out.append(f)
        for j in range(3):
            def f(j=j):
                if j == 0:
                    k(f's_add_u32 m0, s55, {st*STAGE}')
                k('s_mov_b64 exec, s[62:63]')
                k(f'buffer_load_dwordx4 v{LN}, s[16:19], s{68 if guard else 52} offen offset:{768*j} lds')
                k('s_mov_b64 exec, -1')
                if j == 2:
                    k(f's_add_u32 s52, s52, {2*ntg*1024}')
                vm.add(tag, 1)
            out.append(f)
        return out

    for f in group_parts(0, ('g', 0), False):
        f()
    if epi == 'gate':
        srd(k, 24, p['ws'], 'z')
        srd(k, 28, p['b_sp'], 'b_sp')
        k('s_lshr_b32 s69, s48, 1')
        k(f's_mul_i32 s69, s69, {288*1024}')
        k('s_mul_i32 s64, s43, 9216')
        k('s_add_u32 s69, s69, s64')
        k('s_and_b32 s64, s48, 1')
        k('s_lshl_b32 s64, s64, 3')
        k('s_add_u32 s69, s69, s64')
        k('s_add_u32 s70, s69, 4096')
        k('s_add_u32 s71, s69, 8192')
        k('v_and_b32 v3, 15, v2')
        k('v_lshlrev_b32 v7, 1, v3')
        k('s_lshl_b32 s64, s48, 5')
    for st_ in range(1, 3):
        for f in group_parts(st_, ('g', st_), False):
            f()
    if epi == 'gate':
        k(f'buffer_load_ushort v{EX+18}, v7, s[28:31], s64 offen')
        for nt in range(NT):
            k(f'buffer_load_dwordx2 v[{EX+2*nt}:{EX+2*nt+1}], v{LN}, s[24:27], s{69+nt//4} offen offset:{1024*(nt%4)}')
    for i in range(72):
        k(f'v_accvgpr_write_b32 a{i}, 0')
    state = {'r': 0, 'u': 0}

    def read_frag(st, nt, tag):
        b = BF + 4 * (state['r'] % NB)
        state['r'] += 1
        off = st * STAGE + nt * 1024
        k(f'ds_read_b128 v[{b}:{b+3}], v{TRA + off // 65536} offset:{off % 65536}')
        lg.add(tag, 1)
    AHEAD = NB - 1
    BARF = 3

    def step(s):
        st = s % R
        pend = []
        for f in range(9):
            if f == BARF:
                vm.wait(('g', s + 1))
                k('s_barrier')
                pend = group_parts((st + 3) % R, ('g', s + 3), True)
            nf = f + AHEAD
            if nf < 9:
                read_frag(st, nf, ('f', s, nf))
            else:
                read_frag((st + 1) % R, nf - 9, ('f', s + 1, nf - 9))
            lg.wait(('f', s, f))
            b = BF + 4 * (state['u'] % NB)
            state['u'] += 1
            for mt in range(2):
                a = AF + (st * 2 + mt) * 4
                d = (mt * NT + f) * 4
                k(f'{MF} a[{d}:{d+3}], v[{b}:{b+3}], v[{a}:{a+3}], a[{d}:{d+3}]')
            if pend:
                pend.pop(0)()
        assert not pend

    k('s_waitcnt vmcnt(%d)' % (20 if epi == 'gate' else 10))
    vm.q = vm.q[5:]
    k('s_barrier')
    for f in range(AHEAD):
        read_frag(0, f, ('f', 0, f))
    k(f's_mov_b32 s56, {nsteps // R}')
    L = k.label('loop')
    vq0 = list(vm.q); lq0 = list(lg.q)
    k(f'{L}:')
    for u in range(R):
        step(u)
    assert [(a, b - R) for (a, b) in vm.q] == vq0
    assert [(a, b - R, c) for (a, b, c) in lg.q] == lq0
    k('s_sub_u32 s56, s56, 1')
    k('s_cmp_lg_u32 s56, 0')
    k(f's_cbranch_scc1 {L}')
    k.check_backedge(L)
    k('s_waitcnt vmcnt(0) lgkmcnt(0)')
    k('s_barrier')
    k('s_mul_i32 s64, s45, 9216')
    k(f'v_add_u32 v1, s64, v{LN}')
    k('s_xor_b32 s64, s45, 4')
    k('s_mul_i32 s64, s64, 9216')
    k(f'v_add_u32 v4, s64, v{LN}')
    T = BF
    for nt in range(NT):
        t = T + 4 * nt
        for r in range(4):
            k(f'v_accvgpr_read_b32 v{t+r}, a{(NT+nt)*4+r}')
        k(f'ds_write_b128 v1, v[{t}:{t+3}] offset:{nt*1024}')
    if epi == 'part2':
        srd(k, 20, p['ws'], 'p2')
        k(f's_mul_i32 s57, s44, {128*4*5120}')
        k('s_lshl_b32 s64, s48, 2')
        k('s_add_u32 s64, s64, s43')
        k('s_mul_i32 s64, s64, 5120')
        k('s_add_u32 s57, s57, s64')
    else:
        srd(k, 20, p['ws'], 'y')
        k(f's_mul_i32 s57, s48, {72*1024}')
        k('s_mul_i32 s58, s43, 9')
    k('s_waitcnt lgkmcnt(0)')
    k('s_barrier')
    PR = T
    W = T + 36
    for nt in range(NT):
        k(f'ds_read_b128 v[{PR+4*nt}:{PR+4*nt+3}], v4 offset:{nt*1024}')
    if epi == 'gate':
        k(f'v_lshlrev_b32 v{EX+18}, 16, v{EX+18}')
    for nt in range(NT):
        t = PR + 4 * nt
        w = W + 4 * (nt % 4)
        for r in range(4):
            k(f'v_accvgpr_read_b32 v{w+r}, a{nt*4+r}')
        k(f's_waitcnt lgkmcnt({8-nt})')
        for r in range(4):
            k(f'v_add_f32 v{t+r}, v{t+r}, v{w+r}')
        if epi == 'part2':
            q_ = PR + 8 * (nt // 2) + 2 * (nt % 2)
            k(f'v_cvt_pk_bf16_f32 v{q_}, v{t}, v{t+1}')
            k(f'v_cvt_pk_bf16_f32 v{q_+1}, v{t+2}, v{t+3}')
            if nt % 2 == 1:
                k(f'buffer_store_dwordx4 v[{q_-2}:{q_+1}], v{LN}, s[20:23], s57 offen offset:{1024*(nt//2)} {SC}')
            elif nt == 8:
                k('s_add_u32 s57, s57, 4096')
                k(f'buffer_store_dwordx2 v[{q_}:{q_+1}], v{LN}, s[20:23], s57 offen {SC}')
        else:
            z = EX + 2 * nt
            for r in range(4):
                k(f'v_add_f32 v{t+r}, v{t+r}, v{EX+18}')
            k(f'v_lshlrev_b32 v{w}, 16, v{z}')
            k(f'v_and_b32 v{w+1}, 0xffff0000, v{z}')
            k(f'v_lshlrev_b32 v{w+2}, 16, v{z+1}')
            k(f'v_and_b32 v{w+3}, 0xffff0000, v{z+1}')
            for r in range(4):
                k(f'v_mul_f32 v{t+r}, v{t+r}, v{w+r}')
            k(f'v_cvt_pk_bf16_f32 v{t}, v{t}, v{t+1}')
            k(f'v_cvt_pk_bf16_f32 v{t+1}, v{t+2}, v{t+3}')
            k(f's_add_u32 s59, s58, {nt}')
            k('s_lshr_b32 s64, s59, 1')
            k('s_lshl_b32 s64, s64, 10')
            k('s_and_b32 s59, s59, 1')
            k('s_lshl_b32 s59, s59, 3')
            k('s_add_u32 s59, s59, s64')
            k('s_add_u32 s59, s59, s57')
            k(f'buffer_store_dwordx2 v[{t}:{t+1}], v{LN}, s[20:23], s59 offen {SC}')
    k(f'{done}:')
    k('s_endpgm')
    k.nacc = 72
    return k, (256, 512, R * STAGE)
```

```python
from common import *
from prep import *
from small import ln_core, LOG2E


def dbg_srd(k, sd, sptr):
    k(f's_mov_b32 s{sd}, s{sptr}')
    k(f's_mov_b32 s{sd+1}, s{sptr+1}')
    k(f's_mov_b32 s{sd+2}, 256')
    k(f's_mov_b32 s{sd+3}, 0x00020000')


def poll(k, srd_, voff, target, tmp):
    L = k.label('poll')
    k(f'{L}:')
    k(f'buffer_load_dword v{tmp}, v{voff}, s[{srd_}:{srd_+3}], 0 offen sc0 sc1')
    k('s_waitcnt vmcnt(0)')
    k(f'v_readfirstlane_b32 s38, v{tmp}')
    k('s_nop 3')
    k(f's_cmp_ge_u32 s38, {target}')
    d = k.label('polld')
    k(f's_cbranch_scc1 {d}')
    k('s_sleep 8')
    k(f's_branch {L}')
    k(f'{d}:')


def k_pre(preps):
    k = Kernel('pre_kernel')
    done = k.label('done'); lnl = k.label('ln'); pp = k.label('prep')
    k('s_cmp_ge_u32 s2, 364')
    k(f's_cbranch_scc1 {pp}')
    k('s_cmp_ge_u32 s2, 108')
    k(f's_cbranch_scc1 {lnl}')
    p = load_ptrs(k, ['c', 'w_mod', 'ws', 'dbg'], 4)
    k('v_lshrrev_b32 v1, 6, v0')
    k('v_and_b32 v2, 63, v0')
    k('v_readfirstlane_b32 s3, v1')
    k('v_lshrrev_b32 v10, 4, v2')
    k('v_and_b32 v11, 15, v2')
    k('v_mul_u32_u24 v3, 6912, v10')
    k('v_lshl_add_u32 v3, v11, 2, v3')
    k('s_mul_i32 s24, s3, 144*6912')
    k('s_lshl_b32 s25, s2, 6')
    k('s_add_u32 s24, s24, s25')
    k('v_lshlrev_b32 v4, 1, v0')
    k('s_waitcnt lgkmcnt(0)')
    srd(k, 12, p['c'], 'c')
    srd(k, 16, p['w_mod'], 'w_mod')
    srd(k, 20, p['ws'], 'mod')
    dbg_srd(k, 28, p['dbg'])
    for j in range(3):
        k(f'buffer_load_ushort v{5+j}, v4, s[12:15], 0 offen offset:{512*j}')
    for i in range(36):
        k(f'buffer_load_dword v{16+i}, v3, s[16:19], s24 offen')
        if i < 35:
            k('s_add_u32 s24, s24, 4*6912')
    k('s_waitcnt vmcnt(36)')
    k('v_lshlrev_b32 v9, 2, v0')
    for j in range(3):
        c = 5 + j
        k(f'v_lshlrev_b32 v{c}, 16, v{c}')
        k(f'v_mul_f32 v12, {f32bits(-LOG2E)}, v{c}')
        k('v_exp_f32 v12, v12')
        k('v_add_f32 v12, 1.0, v12')
        k('v_rcp_f32 v12, v12')
        k(f'v_mul_f32 v12, v{c}, v12')
        rbf(k, 12, 12)
        k(f'ds_write_b32 v9, v12 offset:{1024*j}')
    k('s_waitcnt lgkmcnt(0)')
    k('s_barrier')
    k('s_mul_i32 s26, s3, 576')
    k('v_lshl_add_u32 v12, v10, 2, s26')
    for i in range(36):
        k(f'ds_read_b32 v{56+i}, v12 offset:{16*i}')
        if i % 12 == 11:
            k('s_waitcnt lgkmcnt(0)')
    k('v_mov_b32 v12, 0')
    k('v_mov_b32 v13, 0')
    k('s_waitcnt vmcnt(0)')
    for i in range(36):
        k(f'v_lshlrev_b32 v14, 16, v{16+i}')
        k(f'v_and_b32 v15, 0xffff0000, v{16+i}')
        k(f'v_fmac_f32 v12, v14, v{56+i}')
        k(f'v_fmac_f32 v13, v15, v{56+i}')
    k('v_lshlrev_b32 v9, 3, v0')
    k('ds_write_b64 v9, v[12:13] offset:4096')
    k('s_waitcnt lgkmcnt(0)')
    k('s_barrier')
    k('s_cmp_lg_u32 s3, 0')
    k(f's_cbranch_scc1 {done}')
    k('v_and_b32 v9, 31, v2')
    k('v_lshlrev_b32 v9, 2, v9')
    for i in range(16):
        k(f'ds_read_b32 v{16+i}, v9 offset:{4096+128*i}')
    k('s_waitcnt lgkmcnt(0)')
    for i in range(1, 16):
        k(f'v_add_f32 v16, v16, v{16+i}')
    rbf(k, 16, 16)
    k('s_lshl_b32 s25, s2, 7')
    k('buffer_store_dword v16, v9, s[20:23], s25 offen sc0 sc1')
    k('s_waitcnt vmcnt(0)')
    k('s_cmp_ge_u32 s2, 36')
    k(f's_cbranch_scc1 {done}')
    k('v_mov_b32 v1, 1')
    k('v_mov_b32 v3, 0')
    k('s_mov_b64 exec, 1')
    k('buffer_atomic_add v1, v3, s[28:31], 0 offen sc1')
    k(f'{done}:')
    k('s_endpgm')
    k(f'{lnl}:')
    p = load_ptrs(k, ['x', 'ws', 'dbg'], 4)
    k('v_lshrrev_b32 v1, 5, v0')
    k('v_and_b32 v2, 31, v0')
    k('s_sub_u32 s3, s2, 108')
    k('s_lshl_b32 s3, s3, 3')
    k('v_add_u32 v1, s3, v1')
    k('v_mul_u32_u24 v3, 1152, v1')
    k('v_lshl_add_u32 v3, v2, 2, v3')
    k('v_lshlrev_b32 v4, 3, v2')
    k('s_waitcnt lgkmcnt(0)')
    srd(k, 12, p['x'], 'x')
    srd(k, 16, p['ws'], 'mod')
    srd(k, 20, p['ws'], 'h')
    dbg_srd(k, 28, p['dbg'])
    X, RAW, SH, SC = 16, 40, 52, 72
    for i in range(9):
        k(f'buffer_load_dword v{RAW+i}, v3, s[12:15], 0 offen offset:{128*i}')
    k('v_lshrrev_b32 v5, 4, v1')
    k('v_mul_u32_u24 v5, 18432, v5')
    k('v_lshrrev_b32 v6, 4, v2')
    k('v_lshl_add_u32 v5, v6, 10, v5')
    k('v_bfe_u32 v6, v2, 2, 2')
    k('v_lshl_add_u32 v5, v6, 8, v5')
    k('v_and_b32 v6, 15, v1')
    k('v_lshl_add_u32 v5, v6, 4, v5')
    k('v_and_b32 v6, 3, v2')
    k('v_lshl_add_u32 v5, v6, 2, v5')
    k('s_waitcnt vmcnt(0)')
    for i in range(9):
        k(f'v_lshlrev_b32 v{X+2*i}, 16, v{RAW+i}')
        k(f'v_and_b32 v{X+2*i+1}, 0xffff0000, v{RAW+i}')
    ln_core(k, X, 18, 6, 32, 576)
    k('v_mov_b32 v12, 0')
    k('v_readfirstlane_b32 s37, v0')
    sk = k.label('skip')
    k('s_nop 3')
    k('s_cmp_lg_u32 s37, 0')
    k(f's_cbranch_scc1 {sk}')
    poll(k, 28, 12, 36, 13)
    k(f'{sk}:')
    k('s_barrier')
    k('s_mov_b32 s33, 2304')
    for i in range(9):
        k(f'buffer_load_dwordx2 v[{SH+2*i}:{SH+2*i+1}], v4, s[16:19], 0 offen offset:{256*i} sc0 sc1')
        k(f'buffer_load_dwordx2 v[{SC+2*i}:{SC+2*i+1}], v4, s[16:19], s33 offen offset:{256*i} sc0 sc1')
    for i in range(0, 18, 2):
        a, b = X + i, X + i + 1
        k(f's_waitcnt vmcnt({16 - i + i//2})')
        k(f'v_fma_f32 v{SC+i}, v{SC+i}, v10, v10')
        k(f'v_fma_f32 v{SC+i+1}, v{SC+i+1}, v10, v10')
        k(f'v_fma_f32 v{a}, v{a}, v{SC+i}, v{SH+i}')
        k(f'v_fma_f32 v{b}, v{b}, v{SC+i+1}, v{SH+i+1}')
        k(f'v_cvt_pk_bf16_f32 v{a}, v{a}, v{b}')
        k(f's_mov_b32 s36, {2048*(i//2)}')
        k(f'buffer_store_dword v{a}, v5, s[20:23], s36 offen sc0 sc1')
    k('s_endpgm')
    k(f'{pp}:')
    nwg = emit_prep_section(k, 364, list(preps), 4, done)
    return k, (364 + nwg, 256, 4 * 9216)


def k_mod2(preps):
    k = Kernel('mod_kernel')
    done = k.label('done'); pp = k.label('prep')
    k('s_cmp_ge_u32 s2, 108')
    k(f's_cbranch_scc1 {pp}')
    p = load_ptrs(k, ['c', 'w_mod', 'ws'], 4)
    k('v_lshrrev_b32 v1, 6, v0')
    k('v_and_b32 v2, 63, v0')
    k('v_readfirstlane_b32 s3, v1')
    k('v_lshrrev_b32 v10, 4, v2')
    k('v_and_b32 v11, 15, v2')
    k('v_mul_u32_u24 v3, 6912, v10')
    k('v_lshl_add_u32 v3, v11, 2, v3')
    k('s_mul_i32 s24, s3, 144*6912')
    k('s_lshl_b32 s25, s2, 6')
    k('s_add_u32 s24, s24, s25')
    k('v_lshlrev_b32 v4, 1, v0')
    k('s_waitcnt lgkmcnt(0)')
    srd(k, 12, p['c'], 'c')
    srd(k, 16, p['w_mod'], 'w_mod')
    srd(k, 20, p['ws'], 'mod')
    for j in range(3):
        k(f'buffer_load_ushort v{5+j}, v4, s[12:15], 0 offen offset:{512*j}')
    for i in range(36):
        k(f'buffer_load_dword v{16+i}, v3, s[16:19], s24 offen')
        if i < 35:
            k('s_add_u32 s24, s24, 4*6912')
    k('s_waitcnt vmcnt(36)')
    k('v_lshlrev_b32 v9, 2, v0')
    for j in range(3):
        c = 5 + j
        k(f'v_lshlrev_b32 v{c}, 16, v{c}')
        k(f'v_mul_f32 v12, {f32bits(-LOG2E)}, v{c}')
        k('v_exp_f32 v12, v12')
        k('v_add_f32 v12, 1.0, v12')
        k('v_rcp_f32 v12, v12')
        k(f'v_mul_f32 v12, v{c}, v12')
        rbf(k, 12, 12)
        k(f'ds_write_b32 v9, v12 offset:{1024*j}')
    k('s_waitcnt lgkmcnt(0)')
    k('s_barrier')
    k('s_mul_i32 s26, s3, 576')
    k('v_lshl_add_u32 v12, v10, 2, s26')
    for i in range(36):
        k(f'ds_read_b32 v{56+i}, v12 offset:{16*i}')
        if i % 12 == 11:
            k('s_waitcnt lgkmcnt(0)')
    k('v_mov_b32 v12, 0')
    k('v_mov_b32 v13, 0')
    k('s_waitcnt vmcnt(0)')
    for i in range(36):
        k(f'v_lshlrev_b32 v14, 16, v{16+i}')
        k(f'v_and_b32 v15, 0xffff0000, v{16+i}')
        k(f'v_fmac_f32 v12, v14, v{56+i}')
        k(f'v_fmac_f32 v13, v15, v{56+i}')
    k('v_lshlrev_b32 v9, 3, v0')
    k('ds_write_b64 v9, v[12:13] offset:4096')
    k('s_waitcnt lgkmcnt(0)')
    k('s_barrier')
    k('s_cmp_lg_u32 s3, 0')
    k(f's_cbranch_scc1 {done}')
    k('v_and_b32 v9, 31, v2')
    k('v_lshlrev_b32 v9, 2, v9')
    for i in range(16):
        k(f'ds_read_b32 v{16+i}, v9 offset:{4096+128*i}')
    k('s_waitcnt lgkmcnt(0)')
    for i in range(1, 16):
        k(f'v_add_f32 v16, v16, v{16+i}')
    rbf(k, 16, 16)
    k('s_lshl_b32 s25, s2, 7')
    k('buffer_store_dword v16, v9, s[20:23], s25 offen sc0 sc1')
    k(f'{done}:')
    k('s_endpgm')
    k(f'{pp}:')
    nwg = emit_prep_section(k, 108, list(preps), 4, done)
    return k, (108 + nwg, 256, 4 * 9216)
```

```python
import sys
from common import *
from small import *
from gemm import *
from attn import *
from attn16 import *
from gemm2 import *
from gemm3 import *
from pre import *
from g5f import *
from ln2f import *
from g3n import *
from gemm4 import *

def build(rounding=True, stamp=False, **akw):
    R1 = 8
    R1 = 4
    ks = [k_mod2(('v', 'wq')), k_ln(1, ('wo', 'w_out') if stamp == 'attn' else ()), k_attn16(stamp=(stamp == 'attn'), preps=(stamp != 'attn'), **akw),
          k_gemm3('g2_kernel', 'o', 131072, 'wof', 36, 16, 1, 4, 4, 'part2', stamp=(stamp == 'g2'), R=R1),
          k_ln2f(('w_in', 'w_sp') if stamp == 'attn' else ()),
          k_g3n(),
          k_lnz(),
          k_gemm3('g4_kernel', 'wspf', 65536, 'z2', 144, 32, 1, 16, 1, 'gate', stamp=(stamp == 'g4'), R=R1),
          k_g5f()]
    ref = open('adaLN_cond__gqa_block_cached__mixer_gmlp__prompt.s.ref').read()
    hdr = ''.join(l + '\n' for l in ref.split('\n') if l.startswith(';') and '@launch' not in l and 'Override' not in l and 'grid=ceil' not in l)
    for k, (g, b, lds) in ks:
        hdr += f'; @launch kernel={k.name} grid=({g},1,1) block=({b},1,1) lds={lds}\n'
    body = '.amdgcn_target "amdgcn-amd-amdhsa--gfx950"\n.text\n'
    for k, _ in ks:
        body += f'.globl {k.name}\n.type {k.name},@function\n' + k.text()
    body += '.section .rodata,"a"\n'
    for k, _ in ks:
        body += k.desc()
    import re
    body = re.sub(r'(buffer_store_dword[x24]* .* offen( offset:[0-9]+)?)\n', r'\1 sc0 sc1\n', body)
    body = body.replace(' NOSC', '')
    return hdr + body

if __name__ == '__main__':
    out = sys.argv[1] if len(sys.argv) > 1 else 'adaLN_cond__gqa_block_cached__mixer_gmlp__prompt.s'
    rounding = 'round' in sys.argv[2:]
    open(out, 'w').write(build(rounding, sys.argv[2] if len(sys.argv) > 2 else False))
```

```python
from common import *
from attn import Cnt
from pre import dbg_srd, poll
import math

LOG2E = 1.4426950408889634
MF = 'v_mfma_f32_16x16x32_bf16'
SC = 'sc0 sc1'


def k_g3n(stamp=False, fuse=False):
    k = Kernel('g3_kernel')
    R = 4
    STAGE = 36864
    nsteps = 9
    ntg = 288
    lda = 18432
    done = k.label('done')
    k('s_cmp_ge_u32 s2, 256')
    k(f's_cbranch_scc1 {done}')
    p = load_ptrs(k, ['ws', 'dbg'], 4)
    k('s_and_b32 s40, s2, 7')
    k('s_lshr_b32 s41, s2, 3')
    k('s_lshr_b32 s42, s40, 1')
    k('s_lshl_b32 s42, s42, 2')
    k('s_and_b32 s43, s41, 3')
    k('s_add_u32 s42, s42, s43')
    k('s_and_b32 s43, s40, 1')
    k('s_lshl_b32 s43, s43, 3')
    k('s_lshr_b32 s44, s41, 2')
    k('s_add_u32 s43, s43, s44')
    k('v_lshrrev_b32 v1, 6, v0')
    k('v_and_b32 v2, 63, v0')
    k('v_readfirstlane_b32 s45, v1')
    k('v_lshlrev_b32 v8, 4, v2')
    k('s_lshr_b32 s46, s45, 1')
    k('s_and_b32 s47, s45, 1')
    k('s_lshl_b32 s48, s42, 7')
    k('s_lshl_b32 s49, s46, 5')
    k('s_add_u32 s48, s48, s49')
    LN = 8
    AOFF = 9
    TRA = 11
    BF = 16
    NB = 6
    AF = BF + 4 * NB
    k('s_lshr_b32 s50, s48, 4')
    k(f's_mul_i32 s50, s50, {lda}')
    k(f'v_add_u32 v{AOFF}, s50, v{LN}')
    k(f'v_add_u32 v{AOFF+1}, {lda}, v{AOFF}')
    k('s_mov_b32 s51, 0')
    k('s_lshr_b32 s60, s45, 2')
    k('s_and_b32 s61, s45, 3')
    k(f's_mul_i32 s52, s60, {ntg*1024}')
    k('s_mul_i32 s53, s43, 18432')
    k('s_add_u32 s52, s52, s53')
    k('s_mul_i32 s53, s61, 4608')
    k('s_add_u32 s52, s52, s53')
    k('s_mul_i32 s55, s60, 18432')
    k('s_add_u32 s55, s55, s53')
    k('s_mul_i32 s53, s47, 9216')
    k(f'v_add_u32 v{TRA}, s53, v{LN}')
    k(f'v_add_u32 v{TRA+1}, 65536, v{TRA}')
    k(f'v_add_u32 v{TRA+2}, 131072, v{TRA}')
    k('s_mov_b32 s62, -1')
    k('s_mov_b32 s63, 0xffff')
    k('s_waitcnt lgkmcnt(0)')
    srd(k, 12, p['ws'], 'h2')
    srd(k, 16, p['ws'], 'winf')
    vm = Cnt(k, 'vmcnt', 63)
    lg = Cnt(k, 'lgkmcnt', 15)

    def group_parts(st, tag):
        out = []
        for ks in range(2):
            for mt in range(2):
                def f(mt=mt, ks=ks):
                    r = AF + (st * 4 + ks * 2 + mt) * 4
                    k(f'buffer_load_dwordx4 v[{r}:{r+3}], v{AOFF+mt}, s[12:15], s51 offen offset:{1024*ks}')
                    if mt == 1 and ks == 1:
                        k('s_add_u32 s51, s51, 2048')
                    vm.add(tag, 1)
                out.append(f)
        for j in range(6):
            def f(j=j):
                if j % 3 == 0:
                    k(f's_add_u32 m0, s55, {st*STAGE + 2304*(j//3)}')
                    if j:
                        k('s_add_u32 s52, s52, 2304')
                k('s_mov_b64 exec, s[62:63]')
                k(f'buffer_load_dwordx4 v{LN}, s[16:19], s52 offen offset:{768*(j%3)} lds')
                k('s_mov_b64 exec, -1')
                if j == 5:
                    k(f's_add_u32 s52, s52, {2*ntg*1024 - 2304}')
                vm.add(tag, 1)
            out.append(f)
        return out

    for st_ in range(3):
        for f in group_parts(st_, ('g', st_)):
            f()
    for i in range(72):
        k(f'v_accvgpr_write_b32 a{i}, 0')
    state = {'r': 0, 'u': 0}

    def read_frag(st, f, tag):
        b = BF + 4 * (state['r'] % NB)
        state['r'] += 1
        off = st * STAGE + (f // 9) * 18432 + (f % 9) * 1024
        k(f'ds_read_b128 v[{b}:{b+3}], v{TRA + off // 65536} offset:{off % 65536}')
        lg.add(tag, 1)
    AHEAD = NB - 1
    BARF = 6

    def mainloop(swap):
        vm.wait(('g', 0))
        k('s_barrier')
        for f in range(AHEAD):
            read_frag(0, f, ('f', 0, f))
        for s in range(nsteps):
            st = s % R
            last = s == nsteps - 1
            pend = []
            for f in range(18):
                if f == BARF and not last:
                    vm.wait(('g', s + 1))
                    k('s_barrier')
                    if s + 3 <= nsteps - 1:
                        pend = group_parts((st + 3) % R, ('g', s + 3))
                nf = f + AHEAD
                if nf < 18:
                    read_frag(st, nf, ('f', s, nf))
                elif not last:
                    read_frag((st + 1) % R, nf - 18, ('f', s + 1, nf - 18))
                lg.wait(('f', s, f))
                b = BF + 4 * (state['u'] % NB)
                state['u'] += 1
                for mt in range(2):
                    a = AF + (st * 4 + (f // 9) * 2 + mt) * 4
                    d = (mt * 9 + f % 9) * 4
                    k(f'{MF} a[{d}:{d+3}], v[{a}:{a+3}], v[{b}:{b+3}], a[{d}:{d+3}]' if swap else f'{MF} a[{d}:{d+3}], v[{b}:{b+3}], v[{a}:{a+3}], a[{d}:{d+3}]')
                if pend:
                    pend.pop(0)()
            assert not pend

    c0 = -2.0 * LOG2E * math.sqrt(2.0 / math.pi)
    z2l = k.label('z2')
    vq, lq, st0 = list(vm.q), list(lg.q), dict(state)
    if fuse:
        k('s_cmp_ge_u32 s43, 8')
        k(f's_cbranch_scc1 {z2l}')
    mainloop(False)
    srd(k, 20, p['ws'], 'z')
    c0 = -2.0 * LOG2E * math.sqrt(2.0 / math.pi)
    k(f's_mov_b32 s58, {f32bits(c0)}')
    k(f's_mov_b32 s59, {f32bits(c0*0.044715)}')
    k('v_mov_b32 v7, s58')
    k('s_lshr_b32 s57, s48, 5')
    k(f's_mul_i32 s57, s57, {288*1024}')
    k('s_mul_i32 s64, s43, 18432')
    k('s_add_u32 s57, s57, s64')
    k('s_mul_i32 s64, s47, 9216')
    k('s_add_u32 s57, s57, s64')
    k.fence(8)
    for nt in range(9):
        t = BF + 16 * (nt % 4)
        w = t + 8
        for mt in range(2):
            for r in range(4):
                k(f'v_accvgpr_read_b32 v{t+4*mt+r}, a{(mt*9+nt)*4+r}')
        for r in range(8):
            k(f'v_mul_f32 v{w+r}, v{t+r}, v{t+r}')
        for r in range(8):
            k(f'v_fma_f32 v{w+r}, v{w+r}, s59, v7')
        for r in range(8):
            k(f'v_mul_f32 v{w+r}, v{w+r}, v{t+r}')
        for r in range(8):
            k(f'v_exp_f32 v{w+r}, v{w+r}')
        for r in range(8):
            k(f'v_add_f32 v{w+r}, 1.0, v{w+r}')
        for r in range(8):
            k(f'v_rcp_f32 v{w+r}, v{w+r}')
        for r in range(8):
            k(f'v_mul_f32 v{t+r}, v{t+r}, v{w+r}')
        for r in range(4):
            k(f'v_cvt_pk_bf16_f32 v{t+r}, v{t+2*r}, v{t+2*r+1}')
        if nt in (4, 8):
            k('s_add_u32 s57, s57, 4096')
        k(f'buffer_store_dwordx4 v[{t}:{t+3}], v{LN}, s[20:23], s57 offen offset:{1024*(nt%4)} {SC}')
    if fuse:
        k(f's_branch {done}')
        k(f'{z2l}:')
        vm.q, lg.q = list(vq), list(lq)
        state.update(st0)
        mainloop(True)
        srd(k, 20, p['ws'], 'z2')
        srd(k, 24, p['ws'], 'stats')
        dbg_srd(k, 28, p['dbg'])
        k(f's_mov_b32 s58, {f32bits(c0)}')
        k(f's_mov_b32 s59, {f32bits(c0*0.044715)}')
        k('v_mov_b32 v7, s58')
        VV = 16
        W8 = VV + 72
        ST = W8 + 8
        k.fence(8)
        for nt in range(9):
            t = VV + 8 * nt
            w = W8
            for mt in range(2):
                for r in range(4):
                    k(f'v_accvgpr_read_b32 v{t+4*mt+r}, a{(mt*9+nt)*4+r}')
            for r in range(8):
                k(f'v_mul_f32 v{w+r}, v{t+r}, v{t+r}')
            for r in range(8):
                k(f'v_fma_f32 v{w+r}, v{w+r}, s59, v7')
            for r in range(8):
                k(f'v_mul_f32 v{w+r}, v{w+r}, v{t+r}')
            for r in range(8):
                k(f'v_exp_f32 v{w+r}, v{w+r}')
            for r in range(8):
                k(f'v_add_f32 v{w+r}, 1.0, v{w+r}')
            for r in range(8):
                k(f'v_rcp_f32 v{w+r}, v{w+r}')
            for r in range(8):
                k(f'v_mul_f32 v{t+r}, v{t+r}, v{w+r}')
            for r in range(8):
                if nt == 0:
                    k(f'v_mov_b32 v{ST+2*r}, v{t+r}')
                    k(f'v_mul_f32 v{ST+2*r+1}, v{t+r}, v{t+r}')
                else:
                    k(f'v_add_f32 v{ST+2*r}, v{ST+2*r}, v{t+r}')
                    k(f'v_fmac_f32 v{ST+2*r+1}, v{t+r}, v{t+r}')

        def red16():
            for sh in (1, 2, 4, 8):
                for i in range(16):
                    k(f'v_add_f32_dpp v{ST+i}, v{ST+i}, v{ST+i} row_ror:{sh} row_mask:0xf bank_mask:0xf')
        red16()
        k('v_lshrrev_b32 v3, 4, v2')
        k('v_lshlrev_b32 v3, 5, v3')
        k('s_lshl_b32 s64, s42, 14')
        k('s_lshl_b32 s65, s46, 8')
        k('s_add_u32 s64, s64, s65')
        k('s_sub_u32 s65, s43, 8')
        k('s_lshl_b32 s65, s65, 1')
        k('s_add_u32 s65, s65, s47')
        k('s_lshl_b32 s65, s65, 10')
        k('s_add_u32 s65, s65, s64')
        k('v_and_b32 v4, 15, v2')
        k('v_cmp_eq_u32 vcc, 0, v4')
        k('s_and_saveexec_b64 s[66:67], vcc')
        for q in range(4):
            k(f'buffer_store_dwordx4 v[{ST+4*q}:{ST+4*q+3}], v3, s[24:27], s65 offen offset:{128*(q//2) + 16*(q%2)} {SC}')
        k('s_mov_b64 exec, s[66:67]')
        k('s_waitcnt vmcnt(0)')
        k('s_barrier')
        sk = k.label('nopoll')
        k('s_lshl_b32 s66, s42, 2')
        k('v_mov_b32 v5, s66')
        k('s_cmp_lg_u32 s45, 0')
        k(f's_cbranch_scc1 {sk}')
        k('v_mov_b32 v6, 1')
        k('s_mov_b64 exec, 1')
        k('buffer_atomic_add v6, v5, s[28:31], 0 offen sc1')
        k('s_mov_b64 exec, -1')
        poll(k, 28, 5, 8, 6)
        k(f'{sk}:')
        k('s_barrier')
        k('v_lshl_add_u32 v3, v4, 10, v3')
        for q in range(4):
            k(f'buffer_load_dwordx4 v[{ST+4*q}:{ST+4*q+3}], v3, s[24:27], s64 offen offset:{128*(q//2) + 16*(q%2)} {SC}')
        k('s_waitcnt vmcnt(0)')
        red16()
        for r in range(8):
            m_, v_ = ST + 2 * r, ST + 2 * r + 1
            k(f'v_mul_f32 v{m_}, {f32bits(1.0/2304)}, v{m_}')
            k(f'v_mul_f32 v{v_}, {f32bits(1.0/2304)}, v{v_}')
            k(f'v_fma_f32 v{v_}, -v{m_}, v{m_}, v{v_}')
            k(f'v_max_f32 v{v_}, 0, v{v_}')
            k(f'v_add_f32 v{v_}, {f32bits(1e-5)}, v{v_}')
            k(f'v_rsq_f32 v{W8}, v{v_}')
            k(f'v_mul_f32 v{W8+1}, v{v_}, v{W8}')
            k(f'v_fma_f32 v{W8+1}, -v{W8+1}, v{W8}, 1.0')
            k(f'v_mul_f32 v{v_}, 0.5, v{W8}')
            k(f'v_fma_f32 v{v_}, v{W8+1}, v{v_}, v{W8}')
        k('s_lshr_b32 s57, s48, 5')
        k(f's_mul_i32 s57, s57, {144*1024}')
        k('s_sub_u32 s64, s43, 8')
        k('s_mul_i32 s64, s64, 18432')
        k('s_add_u32 s57, s57, s64')
        k('s_mul_i32 s64, s47, 9216')
        k('s_add_u32 s57, s57, s64')
        for nt in range(9):
            t = VV + 8 * nt
            for r in range(8):
                k(f'v_sub_f32 v{t+r}, v{t+r}, v{ST+2*r}')
            for r in range(8):
                k(f'v_mul_f32 v{t+r}, v{t+r}, v{ST+2*r+1}')
            for r in range(4):
                k(f'v_cvt_pk_bf16_f32 v{t+r}, v{t+2*r}, v{t+2*r+1}')
            if nt in (4, 8):
                k('s_add_u32 s57, s57, 4096')
            k(f'buffer_store_dwordx4 v[{t}:{t+3}], v{LN}, s[20:23], s57 offen offset:{1024*(nt%4)} {SC}')
    k(f'{done}:')
    k('s_endpgm')
    k.nacc = 72
    return k, (256, 512, R * STAGE)
```

```python
from common import *
from prep import *


def k_ln2f(preps=()):
    k = Kernel('ln2_kernel')
    done = k.label('done'); pp = k.label('prep')
    k('s_cmp_ge_u32 s2, 128')
    k(f's_cbranch_scc1 {pp if preps else done}')
    p = load_ptrs(k, ['x', 'ws'], 4)
    k('v_lshrrev_b32 v1, 6, v0')
    k('v_and_b32 v2, 63, v0')
    k('v_readfirstlane_b32 s3, v1')
    k('v_and_b32 v4, 15, v2')
    k('v_lshrrev_b32 v5, 4, v2')
    k('v_lshlrev_b32 v3, 4, v2')
    k('v_lshlrev_b32 v15, 3, v2')
    k('s_lshl_b32 s32, s2, 2')
    k('s_add_u32 s32, s32, s3')
    k('s_mul_i32 s33, s32, 5120')
    k('s_lshl_b32 s34, s2, 4')
    k('v_add_u32 v6, s34, v4')
    k('v_mul_u32_u24 v6, 1152, v6')
    k('v_lshl_add_u32 v6, v5, 3, v6')
    k('s_mul_i32 s34, s3, 288')
    k('v_lshlrev_b32 v7, 4, v5')
    k('s_mul_i32 s35, s3, 576')
    k('s_waitcnt lgkmcnt(0)')
    srd(k, 12, p['x'], 'x')
    srd(k, 16, p['ws'], 'mod')
    srd(k, 20, p['ws'], 'h2')
    srd(k, 24, p['ws'], 'p2')
    srd(k, 28, p['ws'], 'x1')
    X = 16
    RP = 52
    XR = 124
    V = 142

    def load_part(sp, base):
        k(f's_add_u32 s36, s33, {sp*128*4*5120}')
        k('s_add_u32 s37, s36, 4096')
        for i in range(4):
            k(f'buffer_load_dwordx4 v[{base+4*i}:{base+4*i+3}], v3, s[24:27], s36 offen offset:{1024*i}')
        k(f'buffer_load_dwordx2 v[{base+16}:{base+17}], v3, s[24:27], s37 offen')

    def acc_part(base, first):
        for i in range(18):
            if first:
                k(f'v_lshlrev_b32 v{X+2*i}, 16, v{base+i}')
                k(f'v_and_b32 v{X+2*i+1}, 0xffff0000, v{base+i}')
            else:
                k(f'v_lshlrev_b32 v8, 16, v{base+i}')
                k(f'v_and_b32 v9, 0xffff0000, v{base+i}')
                k(f'v_add_f32 v{X+2*i}, v{X+2*i}, v8')
                k(f'v_add_f32 v{X+2*i+1}, v{X+2*i+1}, v9')

    def load_vec(j, Vb):
        k(f's_add_u32 s36, s35, {j*2304}')
        for nt in range(9):
            k(f'buffer_load_dwordx4 v[{Vb+4*nt}:{Vb+4*nt+3}], v7, s[16:19], s36 offen offset:{64*nt}')
    for sp in range(4):
        load_part(sp, RP + 18 * sp)
    for nt in range(9):
        k(f'buffer_load_dwordx2 v[{XR+2*nt}:{XR+2*nt+1}], v6, s[12:15], s34 offen offset:{32*nt}')
    load_vec(2, V)
    load_vec(4, V + 36)
    load_vec(3, V + 72)
    for sp in range(4):
        k(f's_waitcnt vmcnt({36 + 5*(3-sp)})')
        acc_part(RP + 18 * sp, sp == 0)
    k('s_waitcnt vmcnt(0)')
    k('s_mul_i32 s36, s32, 4608')
    for i in range(18):
        k(f'v_lshlrev_b32 v8, 16, v{XR+i}')
        k(f'v_and_b32 v9, 0xffff0000, v{XR+i}')
        k(f'v_fma_f32 v{X+2*i}, v{X+2*i}, v{V+2*i}, v8')
        k(f'v_fma_f32 v{X+2*i+1}, v{X+2*i+1}, v{V+2*i+1}, v9')
        k(f'v_cvt_pk_bf16_f32 v{XR+i}, v{X+2*i}, v{X+2*i+1}')
        k(f'v_lshlrev_b32 v{X+2*i}, 16, v{XR+i}')
        k(f'v_and_b32 v{X+2*i+1}, 0xffff0000, v{XR+i}')
        if i % 2 == 1:
            nt = i // 2
            if nt == 8:
                k('s_add_u32 s36, s36, 4096')
            k(f'buffer_store_dwordx2 v[{XR+i-1}:{XR+i}], v15, s[28:31], s36 offen offset:{512*(nt%8)}')

    def wg_reduce(r_, off):
        k(f'ds_swizzle_b32 v8, v{r_} offset:0x401F')
        k('s_waitcnt lgkmcnt(0)')
        k(f'v_add_f32 v{r_}, v{r_}, v8')
        k(f'v_mov_b32 v8, v{r_}')
        k(f'v_permlane32_swap_b32 v8, v{r_}')
        k(f'v_add_f32 v{r_}, v{r_}, v8')
        k('v_lshlrev_b32 v8, 4, v4')
        k('s_lshl_b32 s37, s3, 2')
        k('v_add_u32 v9, s37, v8')
        k(f'ds_write_b32 v9, v{r_} offset:{off}')
        k('s_waitcnt lgkmcnt(0)')
        k('s_barrier')
        k(f'ds_read_b128 v[72:75], v8 offset:{off}')
        k('s_waitcnt lgkmcnt(0)')
        k('v_add_f32 v72, v72, v73')
        k('v_add_f32 v74, v74, v75')
        k(f'v_add_f32 v{r_}, v72, v74')
    k(f'v_add_f32 v10, v{X}, v{X+1}')
    k(f'v_add_f32 v11, v{X+2}, v{X+3}')
    for i in range(4, 36, 2):
        k(f'v_add_f32 v10, v10, v{X+i}')
        k(f'v_add_f32 v11, v11, v{X+i+1}')
    k('v_add_f32 v10, v10, v11')
    wg_reduce(10, 0)
    k(f'v_mul_f32 v10, {f32bits(1.0/576)}, v10')
    for i in range(36):
        k(f'v_sub_f32 v{X+i}, v{X+i}, v10')
    k(f'v_mul_f32 v11, v{X}, v{X}')
    k(f'v_mul_f32 v12, v{X+1}, v{X+1}')
    for i in range(2, 36, 2):
        k(f'v_fmac_f32 v11, v{X+i}, v{X+i}')
        k(f'v_fmac_f32 v12, v{X+i+1}, v{X+i+1}')
    k('v_add_f32 v11, v11, v12')
    wg_reduce(11, 256)
    k(f'v_mov_b32 v12, {f32bits(1e-5)}')
    k(f'v_fmac_f32 v12, {f32bits(1.0/576)}, v11')
    k('v_rsq_f32 v13, v12')
    k('v_mul_f32 v8, v12, v13')
    k('v_fma_f32 v8, -v8, v13, 1.0')
    k('v_mul_f32 v9, 0.5, v13')
    k('v_fmac_f32 v13, v8, v9')
    k('s_mul_i32 s36, s2, 18432')
    k('s_mul_i32 s37, s3, 9')
    for nt in range(9):
        x = X + 4 * nt
        for c in range(4):
            k(f'v_fma_f32 v{V+36+4*nt+c}, v{V+36+4*nt+c}, v13, v13')
            k(f'v_fma_f32 v{x+c}, v{x+c}, v{V+36+4*nt+c}, v{V+72+4*nt+c}')
        k(f'v_cvt_pk_bf16_f32 v{x}, v{x}, v{x+1}')
        k(f'v_cvt_pk_bf16_f32 v{x+1}, v{x+2}, v{x+3}')
        k(f's_add_u32 s38, s37, {nt}')
        k('s_lshr_b32 s39, s38, 1')
        k('s_lshl_b32 s39, s39, 10')
        k('s_and_b32 s38, s38, 1')
        k('s_lshl_b32 s38, s38, 3')
        k('s_add_u32 s38, s38, s39')
        k('s_add_u32 s38, s38, s36')
        k(f'buffer_store_dwordx2 v[{x}:{x+1}], v3, s[20:23], s38 offen')
    k(f'{done}:')
    k('s_endpgm')
    nwg = 0
    if preps:
        k(f'{pp}:')
        nwg = emit_prep_section(k, 128, list(preps), 4, done)
    return k, (128 + nwg, 256, 4 * 9216 if preps else 1024)
```
